```python
import torch

def _softmax(x, axis=-1):
    return torch.softmax(x, dim=axis)
def _gelu(x):
    return torch.nn.functional.gelu(x, approximate="tanh")
def _silu(x):
    return torch.nn.functional.silu(x)
def _sigmoid(x):
    return torch.sigmoid(x)
def _layernorm(x, axis=-1, eps=1e-5):
    m = x.mean(dim=axis, keepdim=True)
    v = x.var(dim=axis, keepdim=True, unbiased=False)
    return (x - m) / torch.sqrt(v + eps)
def _scatter_add(tgt, idx, src, axis=0):
    return tgt.clone().index_add_(axis, idx, src)
def _segment_sum(src, seg, n):
    out = torch.zeros((n,) + src.shape[1:], dtype=src.dtype)
    return out.index_add_(0, seg, src)
def _pad(x, pw):
    flat = tuple(v for pair in reversed(pw) for v in pair)
    return torch.nn.functional.pad(x, flat)

kernel_name = 'gated_mix__softmax_full_mha__ssm_conv_s4__prompt'

def setup_inputs():

    _w = (lambda a: (lambda t: t.to(torch.bfloat16) if t.is_floating_point() else t)(torch.as_tensor(a)))
    def _A_setup():
        B, S, D = 1, 2048, 512
        return {
            "x": _w((lambda *s: torch.randn(*s, dtype=torch.bfloat16) * 0.05)(B, S, D)),
            "wqkv": _w((lambda *s: torch.randn(*s, dtype=torch.bfloat16) * 0.8)(D, 3 * D)),
            "wo": _w((lambda *s: torch.randn(*s, dtype=torch.bfloat16) * 0.05)(D, D)),
        }
    _A_in = _A_setup()

    def _B_setup():
        B, L, D, N = 1, 2048, 512, 128
        A_re = -(lambda _x: torch.exp(torch.as_tensor(_x)))((lambda *s: torch.randn(*s, dtype=torch.bfloat16) * 6.4)(D, N))
        A_im = torch.pi * (lambda *s: torch.randn(*s, dtype=torch.bfloat16) * 0.1)(D, N)
        B_re = (lambda *s: torch.randn(*s, dtype=torch.bfloat16) * 0.2)(D, N)
        B_im = (lambda *s: torch.randn(*s, dtype=torch.bfloat16) * 0.2)(D, N)
        C_re = (lambda *s: torch.randn(*s, dtype=torch.bfloat16) * 0.2)(D, N)
        C_im = (lambda *s: torch.randn(*s, dtype=torch.bfloat16) * 0.2)(D, N)
        log_dt = (lambda *s: torch.randn(*s, dtype=torch.bfloat16) * 0.1)(D) * 0.5 - 4.0
        Dskip = (lambda *s: torch.randn(*s, dtype=torch.bfloat16) * 0.1)(D)
        return {
            "u": _w((lambda *s: torch.randn(*s, dtype=torch.bfloat16) * 0.05)(B, L, D)),
            "A_re": _w(A_re),
            "A_im": _w(A_im),
            "B_re": _w(B_re),
            "B_im": _w(B_im),
            "C_re": _w(C_re),
            "C_im": _w(C_im),
            "log_dt": _w(log_dt),
            "Dskip": _w(Dskip),
        }
    _B_in = _B_setup()

    return {
        "A_x": _A_in["x"],
        "A_wqkv": _A_in["wqkv"],
        "A_wo": _A_in["wo"],
        "B_u": _B_in["u"],
        "B_A_re": _B_in["A_re"],
        "B_A_im": _B_in["A_im"],
        "B_B_re": _B_in["B_re"],
        "B_B_im": _B_in["B_im"],
        "B_C_re": _B_in["C_re"],
        "B_C_im": _B_in["C_im"],
        "B_log_dt": _B_in["log_dt"],
        "B_Dskip": _B_in["Dskip"],
        "gate_w": _w((lambda *s: torch.randn(*s, dtype=torch.bfloat16) * 0.05)(512) * 16.0),
    }

def reference(A_x, A_wqkv, A_wo, B_u, B_A_re, B_A_im, B_B_re, B_B_im, B_C_re, B_C_im, B_log_dt, B_Dskip, gate_w):
    def _A_ref(x, wqkv, wo):
        B, S, D = x.shape
        H = 32; Dh = D // H
        qkv = (lambda x, *d: x.permute(*d))((x @ wqkv).reshape(B, S, 3, H, Dh), 2, 0, 3, 1, 4)
        q, k, v = qkv[0], qkv[1], qkv[2]
        scale = Dh ** -0.5
        scores = torch.einsum("bhqd,bhkd->bhqk", q, k) * scale
        p = _softmax(scores, axis=-1)
        o = torch.einsum("bhqk,bhkd->bhqd", p, v)
        return (lambda x, *d: x.permute(*d))(o, 0, 2, 1, 3).reshape(B, S, D) @ wo

    def _B_ref(u, A_re, A_im, B_re, B_im, C_re, C_im, log_dt, Dskip):
        Bsz, L, D = u.shape
        dt = torch.exp(log_dt)[:, None]
        A = A_re + 1j * A_im
        Bc = B_re + 1j * B_im
        Cc = C_re + 1j * C_im
        logdA = dt * A
        dB = dt * Bc
        l = (lambda x, dt: x.to(dt))(torch.arange(L), A_re.dtype)
        P = torch.exp(logdA[:, :, None] * l[None, None, :])
        K = torch.einsum("dn,dnl,dn->dl", Cc, P, dB).real
        L2 = 2 * L
        Kp = _pad(K, ((0, 0), (0, L)))
        up = (lambda x, *d: x.permute(*d))(u, 0, 2, 1)
        up = _pad(up, ((0, 0), (0, 0), (0, L)))
        Kf = (lambda x, axes=(-2,-1): torch.fft.rfft2(x.float(), dim=axes))(Kp[:, None, :], axes=(-2, -1))
        Uf = (lambda x, axes=(-2,-1): torch.fft.rfft2(x.float(), dim=axes))(up[:, :, None, :], axes=(-2, -1))
        Yf = Uf * Kf[None, :, :, :]
        y = (lambda x, s, axes=(-2,-1): torch.fft.irfft2(x, s=s, dim=axes).to(torch.bfloat16))(Yf, (1, L2), axes=(-2, -1))[:, :, 0, :L]
        y = (lambda x, *d: x.permute(*d))(y, 0, 2, 1) + u * Dskip[None, None, :]
        return y

    x = A_x
    g = _sigmoid((x * gate_w).sum(-1, keepdims=True))
    a = _A_ref(x, A_wqkv, A_wo)
    b = _B_ref(x, B_A_re, B_A_im, B_B_re, B_B_im, B_C_re, B_C_im, B_log_dt, B_Dskip)
    return g * a + (1 - g) * b
```

```python
import re
TRANS = ("v_exp_f32","v_log_f32","v_rcp_f32","v_rsq_f32","v_sqrt_f32","v_sin_f32","v_cos_f32","v_exp_f16","v_rcp_iflag_f32")
def regs_of(tok):
    tok = tok.strip()
    tok = re.sub(r'^-', '', tok)
    m = re.match(r'^(?:abs|neg)\((.*)\)$', tok)
    if m: tok = m.group(1)
    m = re.match(r'^\|(.*)\|$', tok)
    if m: tok = m.group(1)
    m = re.match(r'^([vsa])\[(\d+):(\d+)\]$', tok)
    if m: return [(m.group(1), i) for i in range(int(m.group(2)), int(m.group(3))+1)]
    m = re.match(r'^([vsa])(\d+)$', tok)
    if m: return [(m.group(1), int(m.group(2)))]
    if tok in ('vcc','vcc_lo','vcc_hi'): return [('vcc',0)]
    if tok in ('exec','exec_lo','exec_hi'): return [('exec',0)]
    if tok == 'm0': return [('m0',0)]
    return []
def split_ops(s):
    out=[]; d=0; cur=''
    for ch in s:
        if ch in '[(': d+=1
        if ch in '])': d-=1
        if ch==',' and d==0: out.append(cur.strip()); cur=''
        else: cur+=ch
    if cur.strip(): out.append(cur.strip())
    return out
class Ins:
    def __init__(self, text):
        self.text = text
        t = text.split(';')[0].strip()
        self.label = t.endswith(':')
        self.op = ''; self.dst=[]; self.src=[]; self.kind='other'; self.srcC=[]; self.passes=0
        self.nops = 1
        if not t or self.label or t.startswith('.'):
            self.kind='none'; self.nops=0; return
        p = t.split(None,1); self.op = op = p[0]
        rest = p[1] if len(p)>1 else ''
        ops = split_ops(rest)
        if ops:
            last = ops[-1].split()
            mods = last[1:]; ops[-1] = last[0] if last else ''
        else: mods=[]
        self.mods = ' '.join(mods)
        R = [regs_of(o) for o in ops]
        flat = lambda L: [r for x in L for r in x]
        if op == 's_nop': self.kind='nop'; self.nops=int(ops[0],0)+1; return
        if op.startswith('v_mfma') or op.startswith('v_smfmac'):
            self.kind='mfma'; self.dst=R[0]; self.src=R[1]+R[2]; self.srcC=R[3]
            self.passes = 8 if '32x32x16' in op else 4 if '16x16x32' in op else 16
            return
        if op.startswith('v_'):
            self.kind = 'trans' if op.replace('_e32','').replace('_e64','') in TRANS else 'valu'
            if op.startswith('v_cmp'):
                self.dst=R[0]; self.src=flat(R[1:])
            elif op.startswith('v_permlane') and 'swap' in op:
                self.dst=R[0]+R[1]; self.src=R[0]+R[1]
            elif op in ('v_add_co_u32','v_sub_co_u32','v_addc_co_u32','v_subb_co_u32','v_add_co_u32_e32','v_addc_co_u32_e32'):
                self.dst=R[0]+R[1]; self.src=flat(R[2:])
            else:
                self.dst=R[0]; self.src=flat(R[1:])
                if op.startswith('v_fmac') or op.startswith('v_dot2c') or 'dpp' in op or 'row_' in self.mods or 'UNUSED_PRESERVE' in self.mods: self.src=self.src+R[0]
            self.dpp = ('dpp' in op) or ('row_' in self.mods) or ('quad_perm' in self.mods)
            return
        if op.startswith('ds_'):
            self.kind='ds'
            if op.startswith('ds_read') or op.startswith('ds_bpermute') or op.startswith('ds_swizzle') or op.startswith('ds_permute'):
                self.dst=R[0]; self.src=flat(R[1:])
            else: self.src=flat(R)
            return
        if op.startswith('buffer_') or op.startswith('global_'):
            self.kind='vmem'
            self.lds = (' lds' in ' '+self.mods) or ('_lds_' in op)
            if 'load' in op and not self.lds:
                self.dst=R[0]; self.src=flat(R[1:])
            else: self.src=flat(R)
            self.wide_store = ('store' in op) and ('x4' in op or 'x3' in op)
            if self.wide_store:
                self.sdata = R[0] if op.startswith('buffer_') else R[1]
            return
        if op.startswith('s_'):
            self.kind='salu'
            if op.startswith('s_cmp') or op.startswith('s_cbranch') or op in ('s_branch','s_waitcnt','s_barrier','s_endpgm','s_setprio','s_sleep'):
                self.src=flat(R)
            else:
                self.dst=R[0] if R else []; self.src=flat(R[1:])
                if 'saveexec' in op: self.dst=self.dst+[('exec',0)]
            return
def need(prev, cur):
    n=0
    ov = lambda a,b: bool(set(a)&set(b))
    pv = prev.kind in ('valu','trans'); cv = cur.kind in ('valu','trans')
    pdv = [r for r in prev.dst if r[0] in 'va']
    pds = [r for r in prev.dst if r[0] in ('s','vcc')]
    if pv:
        if cur.kind=='mfma' and ov(pdv, cur.src+cur.srcC): n=max(n,2)
        if prev.kind=='trans' and cur.kind=='valu' and ov(pdv,cur.src): n=max(n,1)
        if cv and ov(pds,cur.src): n=max(n,4 if 'lane' in cur.op else 2)
        if cv and cur.op.startswith('v_cndmask') and ('vcc',0) in pds: n=max(n,2)
        if cur.kind=='vmem' and ov(pds,cur.src): n=max(n,5)
        if cur.kind=='salu' and ov(pds,cur.src): n=max(n,1)
        if cv and getattr(cur,'dpp',False) and ov(pdv,cur.src): n=max(n,2)
        if cv and cur.op.startswith('v_permlane') and ov(pdv,cur.src): n=max(n,2)
        if cv and (cur.op.startswith('v_readlane') or cur.op.startswith('v_readfirstlane')) and ov(pdv,cur.src): n=max(n,1)
        if ('op_sel' in prev.mods and not prev.op.startswith('v_pk')) or 'sdwa' in prev.op:
            if cv and ov(pdv,cur.src+cur.dst): n=max(n,1)
    if prev.kind=='mfma':
        big = {4:8,8:12,16:20}[prev.passes]; part={4:6,8:10,16:18}[prev.passes]; war={4:3,8:7,16:15}[prev.passes]
        if cur.kind=='mfma':
            if ov(prev.dst,cur.src): n=max(n,big)
            if ov(prev.dst,cur.srcC) and not (prev.dst==cur.srcC and prev.passes==cur.passes): n=max(n,part)
            if ov(prev.dst,cur.dst) and not (prev.dst==cur.srcC): n=max(n,part)
        elif cur.kind in ('valu','trans','ds','vmem'):
            if ov(prev.dst,cur.src+cur.dst): n=max(n,big)
            if ov(prev.srcC,cur.dst) : n=max(n,war)
    if prev.kind=='salu' and ('m0',0) in prev.dst and cur.kind=='vmem' and cur.lds: n=max(n,1)
    if prev.kind=='vmem' and getattr(prev,'wide_store',False) and ov(prev.sdata,cur.dst): n=max(n,2)
    return n
def pad(lines, report=None):
    out=[]; hist=[]
    for ln in lines:
        cur=Ins(ln)
        if cur.kind=='none': out.append(ln); continue
        req=0; dist=0
        for p in reversed(hist):
            r=need(p,cur)-dist
            if r>req: req=r
            dist+=p.nops
            if dist>=20: break
        if req>0:
            if report is not None: report.append((req,ln.strip()))
            k=req
            while k>0:
                c=min(k,16); nl=f"    s_nop {c-1}"; out.append(nl); hist.append(Ins(nl)); k-=c
        out.append(ln); hist.append(cur)
        if len(hist)>40: hist=hist[-30:]
    return out
def check_loop(body):
    rep=[]; pad(body+body, rep); return rep
class A:
    def __init__(self): self.l=[]
    def __call__(self, s):
        for x in s.strip('\n').split('\n'):
            x=x.strip()
            if not x: continue
            self.l.append(x if x.endswith(':') or x.startswith('.') else '    '+x)
    def ext(self, lines): self.l.extend(lines)
def vr(b,n=1): return f"v{b}" if n==1 else f"v[{b}:{b+n-1}]"
def sr(b,n=1): return f"s{b}" if n==1 else f"s[{b}:{b+n-1}]"
```

```python
from asmlib import *
import math, struct
QF=0x000000; KF=0x200000; VF=0x400000; OF=0x600000; XT=0x800000; KR=0xA00000; BT=0xF00000; G=0x1100000
WS_SIZE=0x1200000
KRC=0x2200; KRS=0x1100
def f32(x): return "0x%08x"%struct.unpack('<I',struct.pack('<f',x))[0]
LOG2E=math.log2(math.e)
def srd(a, d, b, size):
    a(f"s_mov_b32 s{d}, s{b}\ns_and_b32 s{d+1}, s{b+1}, 0xffff\ns_mov_b32 s{d+2}, {hex(size)}\ns_mov_b32 s{d+3}, 0x00020000")

def gemm(a):
    srd(a,12,4,0x200000); srd(a,16,6,512*1536*2); srd(a,20,8,WS_SIZE)
    a("""
    s_and_b32 s30, s2, 7
    s_lshr_b32 s31, s2, 3
    s_lshr_b32 s25, s30, 1
    s_lshl_b32 s25, s25, 2
    s_and_b32 s32, s31, 3
    s_add_u32 s25, s25, s32          ; rt
    s_and_b32 s26, s30, 1
    s_lshl_b32 s26, s26, 3
    s_lshr_b32 s32, s31, 2
    s_add_u32 s26, s26, s32          ; ct
    s_lshl_b32 s27, s25, 17
    s_lshl_b32 s28, s26, 6
    s_lshl_b32 s29, s24, 11
    """)
    vL=1; vXo=2; vWo=3; vXr=[4,5]; vWr=6; vXrB=[7,8]; vWrB=9; vT=10; vT2=11; vT3=12
    a(f"""
    v_lshrrev_b32 v{vT}, 2, v{vL}               ; l>>2
    s_lshl_b32 s32, s24, 5
    v_add_u32 v{vT}, s32, v{vT}                 ; w*32 + (l>>2)
    v_lshlrev_b32 v{vXo}, 10, v{vT}
    v_lshrrev_b32 v{vT}, 4, v{vL}
    v_xor_b32 v{vT}, v{vT}, v{vL}
    v_and_b32 v{vT}, 3, v{vT}
    v_lshl_add_u32 v{vXo}, v{vT}, 4, v{vXo}
    v_mul_u32_u24 v{vT}, 43, v{vL}
    v_lshrrev_b32 v{vT}, 9, v{vT}               ; l/12
    v_mul_u32_u24 v{vT2}, 12, v{vT}
    v_sub_u32 v{vT2}, v{vL}, v{vT2}             ; l%12
    v_mul_u32_u24 v{vWo}, 3072, v{vT}
    v_lshrrev_b32 v{vT3}, 2, v{vT2}
    v_lshl_add_u32 v{vWo}, v{vT3}, 10, v{vWo}
    v_and_b32 v{vT3}, 3, v{vT2}
    v_lshl_add_u32 v{vWo}, v{vT3}, 4, v{vWo}
    s_mul_i32 s32, s24, 24576
    v_add_u32 v{vWo}, s32, v{vWo}
    v_mov_b32 v{vT3}, 0x40000000
    v_cmp_lt_u32 vcc, 47, v{vL}
    v_cndmask_b32 v{vWo}, v{vWo}, v{vT3}, vcc
    """)
    def issue(c):
        slot=c%5
        a(f"""
        s_add_u32 s33, s27, {64*c}
        s_add_u32 m0, s29, {slot*16384}
        s_add_u32 s34, s27, {64*c+16384}
        buffer_load_dwordx4 v{vXo}, s[12:15], s33 offen lds
        s_add_u32 m0, s29, {slot*16384+1024}
        s_add_u32 s35, s28, {c*98304}
        buffer_load_dwordx4 v{vXo}, s[12:15], s34 offen lds
        s_add_u32 m0, s29, {slot*16384+8192}
        s_add_u32 s36, s28, {c*98304+12288}
        buffer_load_dwordx4 v{vWo}, s[16:19], s35 offen lds
        s_add_u32 m0, s29, {slot*16384+8192+1024}
        s_nop 0
        buffer_load_dwordx4 v{vWo}, s[16:19], s36 offen lds
        """)
    for c in range(4): issue(c)
    a(f"""
    v_and_b32 v{vT}, 31, v{vL}                  ; row
    v_lshrrev_b32 v{vT2}, 5, v{vL}              ; hi
    v_lshrrev_b32 v{vT3}, 2, v{vT}
    v_xor_b32 v{vT3}, v{vT3}, v{vT2}
    v_and_b32 v{vT3}, 3, v{vT3}                 ; (hi ^ f)
    v_lshlrev_b32 v{vXr[0]}, 6, v{vT}
    v_lshl_add_u32 v{vXr[0]}, v{vT3}, 4, v{vXr[0]}
    v_add_u32 v{vXr[0]}, s29, v{vXr[0]}
    v_xor_b32 v{vXr[1]}, 32, v{vXr[0]}
    v_add_u32 v{vXrB[0]}, 49152, v{vXr[0]}
    v_add_u32 v{vXrB[1]}, 49152, v{vXr[1]}
    v_lshlrev_b32 v{vWr}, 11, v{vT2}            ; hi*2048
    v_bfe_u32 v{vT}, v{vL}, 2, 2                ; r
    v_mul_u32_u24 v{vT}, 192, v{vT}
    v_add_u32 v{vWr}, v{vWr}, v{vT}
    v_bfe_u32 v{vT}, v{vL}, 4, 1                ; nh
    v_lshl_add_u32 v{vWr}, v{vT}, 5, v{vWr}
    v_and_b32 v{vT}, 3, v{vL}
    v_lshl_add_u32 v{vWr}, v{vT}, 3, v{vWr}
    v_add_u32 v{vWr}, 8192, v{vWr}
    v_add_u32 v{vWrB}, 49152, v{vWr}
    """)
    ACC=[16,32,48]
    for r in range(16,64): a(f"v_mov_b32 v{r}, 0")
    SET=[64,96]
    def reads(c):
        slot=c%5; st=SET[c&1]
        big = slot>=3
        off = slot*16384 - (49152 if big else 0)
        xr = vXrB if big else vXr; wr = vWrB if big else vWr
        for s in range(2):
            a(f"ds_read_b128 {vr(st+4*s,4)}, v{xr[s]} offset:{off}")
            for seg in range(3):
                for q in range(2):
                    a(f"ds_read_b64_tr_b16 {vr(st+8+(s*3+seg)*4+2*q,2)}, v{wr} offset:{off+s*4096+q*1024+seg*64}")
    def mfmas(c):
        st=SET[c&1]
        for s in range(2):
            x=vr(st+4*s,4)
            for seg in range(3):
                w=vr(st+8+(s*3+seg)*4,4); d=vr(ACC[seg],16)
                if seg<2: a(f"v_mfma_f32_32x32x16_bf16 {d}, {w}, {x}, {d}")
                else: a(f"v_mfma_f32_32x32x16_bf16 {d}, {x}, {w}, {d}")
    for c in range(16):
        a(f"s_waitcnt vmcnt({4*min(3,15-c)})\ns_barrier")
        reads(c)
        if c+4<16: issue(c+4)
        if c>0: mfmas(c-1)
        a("s_waitcnt lgkmcnt(0)")
    mfmas(15)
    a(f"""
    s_lshl_b32 s33, s25, 2
    s_add_u32 s33, s33, s24
    s_lshl_b32 s33, s33, 10          ; tile*1024
    s_lshl_b32 s34, s26, 17          ; 2ct*65536
    s_add_u32 s33, s33, s34
    s_add_u32 s34, s33, 0x10000
    s_add_u32 s35, s33, {KF}
    s_add_u32 s36, s33, {KF+0x10000}
    s_add_u32 s37, s33, {VF}
    s_mov_b32 s38, {f32(0.25*LOG2E)}
    v_lshlrev_b32 v{vT}, 4, v{vL}               ; lane*16
    v_bfe_u32 v{vT2}, v{vL}, 4, 1
    v_lshlrev_b32 v{vT2}, 16, v{vT2}
    v_lshrrev_b32 v{vT3}, 5, v{vL}
    v_lshl_add_u32 v{vT2}, v{vT3}, 8, v{vT2}
    v_and_b32 v{vT3}, 15, v{vL}
    v_lshl_add_u32 v{vT2}, v{vT3}, 4, v{vT2}    ; V voffset
    """)
    for r in range(16): a(f"v_mul_f32 v{ACC[0]+r}, s38, v{ACC[0]+r}")
    for seg in range(3):
        for i in range(8): a(f"v_cvt_pk_bf16_f32 v{64+seg*8+i}, v{ACC[seg]+2*i}, v{ACC[seg]+2*i+1}")
    a(f"""
    buffer_store_dwordx4 v[64:67], v{vT}, s[20:23], s33 offen
    buffer_store_dwordx4 v[68:71], v{vT}, s[20:23], s34 offen
    buffer_store_dwordx4 v[72:75], v{vT}, s[20:23], s35 offen
    buffer_store_dwordx4 v[76:79], v{vT}, s[20:23], s36 offen
    buffer_store_dwordx4 v[80:83], v{vT2}, s[20:23], s37 offen
    buffer_store_dwordx4 v[84:87], v{vT2}, s[20:23], s37 offen offset:512
    s_endpgm
    """)

def cmul(a, D, A_, B_, T):
    a(f"v_pk_mul_f32 {vr(T,2)}, {vr(A_,2)}, {vr(B_,2)} op_sel:[0,0] op_sel_hi:[0,1]")
    a(f"v_pk_fma_f32 {vr(D,2)}, {vr(A_,2)}, {vr(B_,2)}, {vr(T,2)} op_sel:[1,1,0] op_sel_hi:[1,0,1] neg_lo:[1,0,0]")

def kgen(a):
    vL=1
    a(f"""
    s_lshl_b32 s26, s25, 1
    s_add_u32 s26, s26, s24             ; d
    s_lshl_b32 s27, s26, 8
    v_lshlrev_b32 v2, 2, v{vL}
    v_add_u32 v2, s27, v2
    s_lshl_b32 s27, s26, 1
    v_mov_b32 v3, s27
    global_load_ushort v10, v3, s[52:53]
    global_load_dword v4, v2, s[40:41]
    global_load_dword v5, v2, s[42:43]
    global_load_dword v6, v2, s[44:45]
    global_load_dword v7, v2, s[46:47]
    global_load_dword v8, v2, s[48:49]
    global_load_dword v9, v2, s[50:51]
    global_load_ushort v11, v3, s[54:55]
    s_mul_i32 s28, s24, 30720
    v_lshlrev_b32 v2, 3, v{vL}
    v_add_u32 v2, s28, v2
    v_and_b32 v12, 31, v{vL}
    v_lshrrev_b32 v13, 5, v{vL}
    v_mul_u32_u24 v3, 528, v12
    v_lshl_add_u32 v3, v13, 4, v3
    v_add_u32 v3, s28, v3
    s_mov_b32 s30, {f32(LOG2E)}
    s_mov_b32 s31, {f32(LOG2E-struct.unpack('<f',struct.pack('<f',LOG2E))[0])}
    s_mov_b32 s32, {f32(math.log(2))}
    s_mov_b32 s33, {f32(1/(2*math.pi))}
    s_mov_b32 s34, 0xffff0000
    s_waitcnt vmcnt(7)
    v_lshlrev_b32 v10, 16, v10          ; ld
    v_mul_f32 v14, s30, v10             ; a
    v_exp_f32 v15, v14
    v_fma_f32 v16, v10, s30, -v14
    v_fma_f32 v16, v10, s31, v16
    v_mul_f32 v16, s32, v16
    v_fma_f32 v15, v15, v16, v15
    v_cvt_pk_bf16_f32 v15, v15, v15
    v_and_b32 v15, s34, v15             ; dt
    s_waitcnt vmcnt(1)
    """)
    S=[20,60]
    for x,b in enumerate(S):
        un = (lambda d,s: a(f"v_lshlrev_b32 v{d}, 16, v{s}")) if x==0 else (lambda d,s: a(f"v_and_b32 v{d}, s34, v{s}"))
        un(b+30,4); un(b+31,5); un(b+32,6); un(b+33,7); un(b+34,8); un(b+35,9)
        a(f"""
        v_mul_f32 v{b+30}, v15, v{b+30}
        v_mul_f32 v{b+31}, v15, v{b+31}
        v_mul_f32 v{b+32}, v15, v{b+32}
        v_mul_f32 v{b+33}, v15, v{b+33}
        v_mul_f32 v{b+0}, s30, v{b+30}
        v_mul_f32 v{b+1}, s33, v{b+31}
        v_mul_f32 v{b+2}, v{b+34}, v{b+32}
        v_mul_f32 v{b+3}, v{b+34}, v{b+33}
        v_fma_f32 v{b+2}, -v{b+35}, v{b+33}, v{b+2}
        v_fma_f32 v{b+3}, v{b+35}, v{b+32}, v{b+3}
        """)
    for (E,k) in ((4,1.0),(6,8.0),(8,256.0)):
        for b in S:
            a(f"""
            v_mul_f32 v{b+30}, {f32(k)}, v{b+0}
            v_mul_f32 v{b+31}, {f32(k)}, v{b+1}
            v_fract_f32 v{b+31}, v{b+31}
            v_exp_f32 v{b+30}, v{b+30}
            v_cos_f32 v{b+32}, v{b+31}
            v_sin_f32 v{b+33}, v{b+31}
            """)
        for b in S:
            a(f"v_mul_f32 v{b+E}, v{b+30}, v{b+32}\nv_mul_f32 v{b+E+1}, v{b+30}, v{b+33}")
    YOFF=25*528
    PK=[100,102,104,106]; pkc=[0]
    def wrX(row, regoff):
        p=PK[pkc[0]%4]; pkc[0]+=1
        for x,b in enumerate(S): a(f"v_cvt_pk_bf16_f32 v{p+x}, v{b+regoff}, -v{b+regoff+1}")
        a(f"ds_write_b64 v2, {vr(p,2)} offset:{row*528}")
    def wrY(j, regoff):
        p=PK[pkc[0]%4]; pkc[0]+=1
        for x,b in enumerate(S): a(f"v_cvt_pk_bf16_f32 v{p+x}, v{b+regoff}, v{b+regoff+1}")
        a(f"ds_write_b64 v2, {vr(p,2)} offset:{YOFF+j*528}")
    def cm(D,A_,B_,T):
        for b in S: a(f"v_pk_mul_f32 {vr(b+T,2)}, {vr(b+A_,2)}, {vr(b+B_,2)} op_sel:[0,0] op_sel_hi:[0,1]")
        for b in S: a(f"v_pk_fma_f32 {vr(b+D,2)}, {vr(b+A_,2)}, {vr(b+B_,2)}, {vr(b+T,2)} op_sel:[1,1,0] op_sel_hi:[1,0,1] neg_lo:[1,0,0]")
    a("v_mov_b32 v108, 0x00003f80\nv_mov_b32 v109, 0x00003f80")
    a(f"ds_write_b64 v2, v[108:109] offset:{YOFF}")
    cm(10,6,6,12)
    wrY(1,6); wrX(0,2); wrY(2,10)
    xops=[]
    cur=2
    sv={0:2}
    holder={0:2,1:36,2:22,3:36,4:24,5:36,6:26,7:36}
    for r in range(1,8):
        xops.append(('cm',holder[r],holder[r-1],4)); xops.append(('wx',r,holder[r]))
    for r,row in ((2,9),(6,13),(0,8),(4,12)):
        xops.append(('cm',holder[r],holder[r],8)); xops.append(('wx',row,holder[r]))
    for row0,row4 in ((10,14),(11,15)):
        xops.append(('cm',holder[0],holder[0],8)); xops.append(('wx',row0,holder[0]))
        xops.append(('cm',holder[4],holder[4],8)); xops.append(('wx',row4,holder[4]))
    for row in (16,17,18,19,24):
        xops.append(('cm',holder[0],holder[0],8)); xops.append(('wx',row,holder[0]))
    yops=[]
    for j in range(3,32):
        if j==3: yops.append(('cm',18,6,10))
        elif j==4: yops.append(('cm',20,10,10))
        else:
            h=18 if j&1 else 20
            yops.append(('cm',h,h,10))
        yops.append(('wy',j,18 if j&1 else 20))
    ix=iy=0
    tsel=[12,14]; tc=0
    while ix<len(xops) or iy<len(yops):
        for lst,which in ((yops,'y'),(xops,'x'),(yops,'y')):
            i = iy if which=='y' else ix
            if i>=len(lst): continue
            o=lst[i]
            if o[0]=='cm': cm(o[1],o[2],o[3],tsel[tc&1]); tc+=1
            elif o[0]=='wx': wrX(o[1],o[2])
            else: wrY(o[1],o[2])
            if which=='y': iy+=1
            else: ix+=1
    D=112
    for r in range(16): a(f"v_mov_b32 v{D+r}, 0")
    a("s_waitcnt lgkmcnt(0)")
    FR=20
    for half in range(2):
        for s in range(8):
            a(f"ds_read_b128 {vr(FR+8*s,4)}, v3 offset:{(half*8+s)*32}")
            a(f"ds_read_b128 {vr(FR+8*s+4,4)}, v3 offset:{YOFF+(half*8+s)*32}")
        for s in range(8):
            a(f"s_waitcnt lgkmcnt({min(15,14-2*s)})")
            a(f"v_mfma_f32_32x32x16_bf16 {vr(D,16)}, {vr(FR+8*s,4)}, {vr(FR+8*s+4,4)}, {vr(D,16)}")
    P=296
    a(f"""
    s_waitcnt vmcnt(0)
    v_lshlrev_b32 v11, 16, v11          ; Dskip
    v_cmp_eq_u32 vcc, 0, v{vL}
    v_cndmask_b32 v11, 0, v11, vcc
    v_mul_u32_u24 v4, {4*P}, v13
    v_add_u32 v4, v4, v12
    v_lshlrev_b32 v4, 2, v4
    v_add_u32 v4, s28, v4
    v_sub_u32 v5, 63, v{vL}
    v_lshlrev_b32 v5, 2, v5
    v_add_u32 v5, s28, v5
    v_and_b32 v6, 1, v{vL}
    v_xor_b32 v6, 1, v6
    v_lshl_add_u32 v6, v6, 2, v5
    v_mov_b32 v7, 0
    v_mov_b32 v8, s28
    v_add_f32 v{D}, v{D}, v11
    """)
    AR=[0,1,2,3,256,258,512,768,1024,1280,1536,1792,2048]
    for r,av in enumerate(AR):
        a(f"ds_write_b32 v4, v{D+r} offset:{((av&7)*P+(av>>3)+1)*4}")
    a(f"ds_write_b32 v8, v7 offset:{7*P*4}")
    a("s_waitcnt lgkmcnt(0)")
    def toff(rho,off): return ((off%8)*P+192-64*rho+(off//8)+1)*4
    rd={}
    reg=20
    for rho in (0,1):
        rd[rho]={8:reg,0:reg+1,'t':reg+2}
        a(f"ds_read_b32 v{reg}, v5 offset:{toff(rho,8)}\nds_read_b32 v{reg+1}, v5 offset:{toff(rho,0)}\nds_read_b32 v{reg+2}, v6 offset:{toff(rho,0)}")
        reg+=3
    rd[2]={8:reg,4:reg+1,0:reg+2}
    a(f"ds_read_b32 v{reg}, v5 offset:{toff(2,8)}\nds_read_b32 v{reg+1}, v5 offset:{toff(2,4)}\nds_read_b32 v{reg+2}, v5 offset:{toff(2,0)}")
    reg+=3
    rd[3]={}
    for off in range(-1,9):
        rd[3][off]=reg; a(f"ds_read_b32 v{reg}, v5 offset:{toff(3,off)}"); reg+=1
    a(f"""
    s_mul_i32 s29, s26, {KRC}
    s_add_u32 s29, s29, {KR}
    s_add_u32 s35, s29, {KRS}
    v_lshlrev_b32 v9, 4, v{vL}
    v_cmp_gt_u32 vcc, 32, v{vL}
    v_cmp_gt_u32 s[36:37], 31, v{vL}
    s_waitcnt lgkmcnt(0)
    """)
    t=rd[3]
    a(f"""
    v_cndmask_b32 v{t[7]}, v{t[7]}, v{t[8]}, vcc
    v_cndmask_b32 v{t[5]}, v{t[5]}, v{t[4]}, vcc
    v_cndmask_b32 v{t[3]}, v{t[3]}, v{t[4]}, vcc
    v_cndmask_b32 v{t[1]}, v{t[1]}, v{t[0]}, vcc
    v_cndmask_b32 v{t[-1]}, v{t[-1]}, v{t[0]}, s[36:37]
    """)
    el={}
    for rho in (0,1): r=rd[rho]; el[rho]=[r[8],r[8],r[8],r['t'],r[0],r[0],r[0],r[0],r[0]]
    r=rd[2]; el[2]=[r[8],r[8],r[4],r[4],r[4],r[0],r[0],r[0],r[0]]
    el[3]=[t[7-e] for e in range(9)]
    O=48
    for rho in range(4):
        e=el[rho]
        for i in range(4): a(f"v_cvt_pk_bf16_f32 v{O+rho*8+i}, v{e[2*i]}, v{e[2*i+1]}")
        for i in range(4): a(f"v_cvt_pk_bf16_f32 v{O+rho*8+4+i}, v{e[2*i+1]}, v{e[2*i+2]}")
        a(f"buffer_store_dwordx4 {vr(O+rho*8,4)}, v9, s[20:23], s29 offen offset:{rho*1024}")
        a(f"buffer_store_dwordx4 {vr(O+rho*8+4,4)}, v9, s[20:23], s35 offen offset:{rho*1024}")
    a(f"""
    v_mov_b32 v84, 0
    v_mov_b32 v85, 0
    v_mov_b32 v86, 0
    v_mov_b32 v87, 0
    v_add_u32 v9, 4096, v9
    s_mov_b64 exec, 0xffff
    buffer_store_dwordx4 v[84:87], v9, s[20:23], s29 offen
    buffer_store_dwordx4 v[84:87], v9, s[20:23], s35 offen
    s_endpgm
    """)

def xt_gate(a):
    vL=1
    a(f"""
    s_lshl_b32 s26, s25, 1
    s_add_u32 s26, s26, s24
    s_sub_u32 s26, s26, 2               ; tau
    s_lshr_b32 s27, s26, 4              ; tb
    s_and_b32 s28, s26, 15              ; db
    s_lshl_b32 s29, s27, 16
    s_lshl_b32 s30, s28, 6
    s_add_u32 s29, s29, s30
    v_lshrrev_b32 v2, 2, v{vL}
    v_lshlrev_b32 v2, 10, v2
    v_and_b32 v3, 3, v{vL}
    v_lshl_add_u32 v2, v3, 4, v2
    v_add_u32 v2, s29, v2
    v_add_u32 v3, 16384, v2
    v_add_u32 v4, 32768, v2
    v_add_u32 v5, 49152, v2
    global_load_dwordx4 v[16:19], v2, s[4:5]
    global_load_dwordx4 v[20:23], v3, s[4:5]
    global_load_dwordx4 v[24:27], v4, s[4:5]
    global_load_dwordx4 v[28:31], v5, s[4:5]
    v_lshlrev_b32 v6, 4, v{vL}          ; lane*16
    s_lshl_b32 s30, s26, 12             ; 4 rows * 1024
    v_add_u32 v7, s30, v6
    global_load_dwordx4 v[32:35], v6, s[56:57]
    global_load_dwordx4 v[36:39], v7, s[4:5]
    global_load_dwordx4 v[40:43], v7, s[4:5] offset:1024
    global_load_dwordx4 v[44:47], v7, s[4:5] offset:2048
    global_load_dwordx4 v[48:51], v7, s[4:5] offset:3072
    s_lshl_b32 s31, s24, 12
    s_add_u32 s31, s31, {61440-8192}
    v_add_u32 v8, s31, v6
    v_lshrrev_b32 v9, 4, v{vL}          ; g
    v_lshlrev_b32 v10, 9, v9            ; g*8*64
    v_bfe_u32 v11, v{vL}, 2, 2
    v_lshl_add_u32 v10, v11, 6, v10
    v_and_b32 v11, 3, v{vL}
    v_lshl_add_u32 v10, v11, 3, v10
    v_add_u32 v10, s31, v10
    v_and_b32 v11, 15, v{vL}
    v_lshlrev_b32 v11, 12, v11
    v_lshl_add_u32 v11, v9, 4, v11
    s_lshl_b32 s32, s28, 17             ; db*32*4096
    s_lshl_b32 s33, s27, 7              ; tb*64*2
    s_add_u32 s32, s32, s33
    s_add_u32 s32, s32, {XT}
    s_add_u32 s33, s32, 65536
    s_mov_b32 s34, 0xffff0000
    s_waitcnt vmcnt(5)
    ds_write_b128 v8, v[16:19]
    ds_write_b128 v8, v[20:23] offset:1024
    ds_write_b128 v8, v[24:27] offset:2048
    ds_write_b128 v8, v[28:31] offset:3072
    s_waitcnt lgkmcnt(0)
    """)
    k=0
    for dh in range(2):
        for th in range(2):
            for q in range(2):
                a(f"ds_read_b64_tr_b16 {vr(52+k*4+2*q,2)}, v10 offset:{th*2048+q*256+dh*32}")
            k+=1
    a("s_waitcnt lgkmcnt(0)")
    k=0
    for dh in range(2):
        for th in range(2):
            a(f"buffer_store_dwordx4 {vr(52+k*4,4)}, v11, s[20:23], s{32+dh} offen offset:{th*64}")
            k+=1
    a("s_waitcnt vmcnt(4)")
    for i in range(4):
        a(f"v_lshlrev_b32 v{68+2*i}, 16, v{32+i}\nv_and_b32 v{69+2*i}, s34, v{32+i}")
    for rho in range(4):
        src=36+4*rho; acc=100+rho
        for i in range(4):
            a(f"""
            v_lshlrev_b32 v80, 16, v{src+i}
            v_and_b32 v81, s34, v{src+i}
            v_mul_f32 v80, v80, v{68+2*i}
            v_mul_f32 v81, v81, v{69+2*i}
            v_cvt_pk_bf16_f32 v82, v80, v81
            v_lshlrev_b32 v80, 16, v82
            v_and_b32 v81, s34, v82
            """)
            if i==0: a(f"v_add_f32 v{acc}, v80, v81")
            else: a(f"v_add_f32 v{acc}, v{acc}, v80\nv_add_f32 v{acc}, v{acc}, v81")
    for mod in ("row_shr:1","row_shr:2","row_shr:4","row_shr:8"):
        for rho in range(4): a(f"v_add_f32_dpp v{100+rho}, v{100+rho}, v{100+rho} {mod} row_mask:0xf bank_mask:0xf bound_ctrl:0")
    for mod,rm in (("row_bcast:15","0xa"),("row_bcast:31","0xc")):
        for rho in range(4): a(f"v_add_f32_dpp v{100+rho}, v{100+rho}, v{100+rho} {mod} row_mask:{rm} bank_mask:0xf")
    a(f"s_mov_b32 s35, {f32(-LOG2E)}")
    for rho in range(4):
        r=100+rho
        a(f"""
        v_cvt_pk_bf16_f32 v{r}, v{r}, v{r}
        v_and_b32 v{r}, s34, v{r}
        v_mul_f32 v{r}, s35, v{r}
        v_exp_f32 v{r}, v{r}
        v_add_f32 v{r}, 1.0, v{r}
        v_rcp_f32 v{r}, v{r}
        v_cvt_pk_bf16_f32 v{r}, v{r}, v{r}
        v_and_b32 v{r}, s34, v{r}
        """)
    a(f"""
    s_lshl_b32 s36, s26, 4
    s_add_u32 s36, s36, {G}
    v_mov_b32 v2, 0
    s_mov_b32 exec_lo, 0
    s_mov_b32 exec_hi, 0x80000000
    buffer_store_dwordx4 v[100:103], v2, s[20:23], s36 offen
    s_endpgm
    """)

def k1():
    a=A()
    a("""
    s_cmp_ge_u32 s2, 512
    s_cbranch_scc1 K1_END
    s_load_dwordx4 s[4:7], s[0:1], 0
    s_load_dwordx2 s[8:9], s[0:1], 120
    s_load_dwordx8 s[40:47], s[0:1], 32
    s_load_dwordx8 s[48:55], s[0:1], 64
    s_load_dwordx2 s[56:57], s[0:1], 96
    v_lshrrev_b32 v2, 6, v0
    v_and_b32 v1, 63, v0
    v_readfirstlane_b32 s24, v2
    s_waitcnt lgkmcnt(0)
    s_cmp_ge_u32 s2, 256
    s_cbranch_scc1 K1_MISC
    """)
    gemm(a)
    a("K1_MISC:")
    srd(a,20,8,WS_SIZE)
    a("""
    s_sub_u32 s25, s2, 256
    s_cmp_ge_u32 s24, 2
    s_cbranch_scc1 K1_XT
    """)
    kgen(a)
    a("K1_XT:")
    xt_gate(a)
    a("K1_END:\ns_endpgm")
    return a.l, dict(vgpr=128, sgpr=64, grid=512, block=256, lds=81920)
```

```python
from asmlib import *
from k1 import *

def kc():
    a=A()
    a("""
    s_cmp_ge_u32 s2, 256
    s_cbranch_scc1 KC_END
    s_load_dwordx2 s[8:9], s[0:1], 120
    v_lshrrev_b32 v2, 6, v0
    v_and_b32 v1, 63, v0
    v_readfirstlane_b32 s24, v2
    s_waitcnt lgkmcnt(0)
    """)
    srd(a,20,8,WS_SIZE)
    a(f"""
    s_lshr_b32 s25, s24, 1              ; ch
    s_and_b32 s26, s24, 1               ; tile
    s_lshl_b32 s27, s2, 1
    s_add_u32 s27, s27, s25             ; d
    s_mul_i32 s28, s24, 6144
    s_lshl_b32 s29, s27, 12
    s_add_u32 s29, s29, {XT}
    v_lshlrev_b32 v2, 6, v1             ; 64*j
    """)
    for p in range(4):
        a(f"""
        s_add_u32 m0, s28, {p*1536+512}
        s_add_u32 s30, s29, {16*p}
        buffer_load_dwordx4 v2, s[20:23], s30 offen lds
        """)
    a(f"""
    v_mov_b32 v4, 0
    v_mov_b32 v5, 0
    v_mov_b32 v6, 0
    v_mov_b32 v7, 0
    v_and_b32 v8, 31, v1                ; j / i
    v_lshrrev_b32 v9, 5, v1             ; hi
    v_lshlrev_b32 v3, 4, v8
    v_mul_u32_u24 v10, 1536, v9
    v_add_u32 v3, v3, v10
    v_add_u32 v3, s28, v3
    ds_write_b128 v3, v[4:7]
    ds_write_b128 v3, v[4:7] offset:3072
    s_lshl_b32 s30, s26, 9
    s_add_u32 s30, s30, {512-48}
    v_add_u32 v3, s30, v3
    v_lshlrev_b32 v10, 3, v9
    v_sub_u32 v10, v10, v8
    v_add_u32 v10, 2063, v10
    v_and_b32 v11, 1, v10
    v_and_b32 v10, -2, v10
    v_lshlrev_b32 v10, 1, v10
    v_mul_u32_u24 v11, {KRS}, v11
    v_add_u32 v10, v10, v11
    v_subrev_u32 v10, 224, v10
    s_mul_i32 s31, s27, {KRC}
    s_add_u32 s31, s31, {KR}
    s_lshl_b32 s32, s26, 3
    s_add_u32 s32, s32, 8               ; iterations
    """)
    for r in range(16): a(f"v_mov_b32 v{16+r}, 0")
    a("s_waitcnt vmcnt(0) lgkmcnt(0)\nKC_LOOP:")
    for s in range(8):
        a(f"buffer_load_dwordx4 {vr(32+4*s,4)}, v10, s[20:23], s31 offen offset:{224-32*s}")
        a(f"ds_read_b128 {vr(64+4*s,4)}, v3 offset:{(3072 if s%2==0 else 0)+48-16*(s>>1)}")
    a("v_subrev_u32 v10, 256, v10\nv_subrev_u32 v3, 64, v3")
    for s in range(8):
        a(f"s_waitcnt vmcnt({7-s}) lgkmcnt({7-s})")
        a(f"v_mfma_f32_32x32x16_bf16 v[16:31], {vr(32+4*s,4)}, {vr(64+4*s,4)}, v[16:31]")
    a(f"""
    s_sub_u32 s32, s32, 1
    s_cmp_lg_u32 s32, 0
    s_cbranch_scc1 KC_LOOP
    s_lshl_b32 s33, s27, 12
    s_lshl_b32 s34, s26, 11
    s_add_u32 s33, s33, s34
    s_add_u32 s33, s33, {BT}
    v_lshlrev_b32 v2, 6, v8
    v_lshl_add_u32 v2, v9, 3, v2
    s_nop 7
    """)
    for g in range(4):
        a(f"v_cvt_pk_bf16_f32 v{32+2*g}, v{16+4*g}, v{17+4*g}\nv_cvt_pk_bf16_f32 v{33+2*g}, v{18+4*g}, v{19+4*g}")
        a(f"buffer_store_dwordx2 {vr(32+2*g,2)}, v2, s[20:23], s33 offen offset:{16*g}")
    a("KC_END:\ns_endpgm")
    return a.l, dict(vgpr=96, sgpr=48, grid=256, block=256, lds=24576)

vQ=4; vNM=8; vS=[24,40]; vP=56; vO=64; vK=[80,84]; vV=[88,96]; vKa=2; vVa=3
def tile_body(a, i, first=False, last=False, nxt2=True):
    sa=vS[i&1]; sb=vS[(i+1)&1]
    def ex(k): a(f"v_exp_f32 v{sa+k}, v{sa+k}")
    def cv(k): a(f"v_cvt_pk_bf16_f32 v{vP+k}, v{sa+2*k}, v{sa+2*k+1}")
    ex(0); ex(1)
    a("s_waitcnt lgkmcnt(0)")
    if not last:
        a(f"v_mfma_f32_32x32x16_bf16 {vr(sb,16)}, {vr(vK[(i+1)&1],4)}, {vr(vQ,4)}, {vr(vNM,16)}")
        a("s_mov_b64 exec, s[40:41]")
        a(f"ds_read_b128 {vr(vV[(i+1)&1],4)}, v{vVa} offset:{(i+1)*1024}")
        a(f"ds_read_b128 {vr(vV[(i+1)&1]+4,4)}, v{vVa} offset:{(i+1)*1024+512}")
        a("s_mov_b64 exec, -1")
        if nxt2: a(f"ds_read_b128 {vr(vK[i&1],4)}, v{vKa} offset:{(i+2)*1024}")
    ex(2); ex(3); cv(0); ex(4); ex(5); cv(1); ex(6); ex(7); cv(2); ex(8); cv(3); ex(9); ex(10)
    a(f"v_mfma_f32_32x32x16_bf16 {vr(vO,16)}, {vr(vV[i&1],4)}, {vr(vP,4)}, {vr(vO,16)}")
    ex(11); cv(4); ex(12); ex(13); cv(5); ex(14); ex(15); cv(6)
    a("s_nop 0")
    cv(7)
    a(f"v_mfma_f32_32x32x16_bf16 {vr(vO,16)}, {vr(vV[i&1]+4,4)}, {vr(vP+4,4)}, {vr(vO,16)}")

def k2():
    a=A()
    a("""
    s_cmp_ge_u32 s2, 256
    s_cbranch_scc1 K2_END
    s_load_dwordx2 s[8:9], s[0:1], 120
    v_lshrrev_b32 v2, 6, v0
    v_and_b32 v1, 63, v0
    v_readfirstlane_b32 s24, v2
    s_waitcnt lgkmcnt(0)
    """)
    srd(a,20,8,WS_SIZE)
    a(f"""
    s_and_b32 s25, s2, 7
    s_lshl_b32 s25, s25, 2
    s_bfe_u32 s26, s2, 0x20003
    s_add_u32 s25, s25, s26             ; head
    s_lshr_b32 s26, s2, 5               ; qtile (256)
    s_lshl_b32 s27, s25, 16             ; head*65536
    s_lshl_b32 s28, s26, 3
    s_add_u32 s28, s28, s24
    s_lshl_b32 s29, s28, 10
    s_add_u32 s29, s29, s27             ; Q offset
    v_lshlrev_b32 v{vKa}, 4, v1
    buffer_load_dwordx4 {vr(vQ,4)}, v{vKa}, s[20:23], s29 offen
    s_lshl_b32 s30, s24, 10             ; wave*1024
    s_add_u32 s31, s27, s30
    s_add_u32 s32, s31, {VF}
    s_add_u32 s31, s31, {KF}
    """)
    for c in range(8):
        a(f"""
        s_add_u32 m0, s30, {c*8192}
        s_add_u32 s33, s31, {c*8192}
        buffer_load_dwordx4 v{vKa}, s[20:23], s33 offen lds
        s_add_u32 m0, s30, {65536+c*8192}
        s_add_u32 s34, s32, {c*8192}
        buffer_load_dwordx4 v{vKa}, s[20:23], s34 offen lds
        """)
    a(f"""
    s_mov_b32 s40, 0x0000ffff
    s_mov_b32 s41, 0x0000ffff
    s_mov_b32 s42, 0
    v_lshrrev_b32 v{vVa}, 5, v1
    v_lshlrev_b32 v{vVa}, 8, v{vVa}
    v_and_b32 v104, 15, v1
    v_lshl_add_u32 v{vVa}, v104, 4, v{vVa}
    v_add_u32 v{vVa}, 65536, v{vVa}
    """)
    for r in range(16): a(f"v_mov_b32 v{vNM+r}, 0")
    for r in range(16): a(f"v_mov_b32 v{vV[0]+r}, 0x3f803f80")
    a("s_waitcnt vmcnt(14)\ns_barrier")
    a("K2_MAIN:")
    for r in range(16): a(f"v_mov_b32 v{vO+r}, 0")
    a(f"""
    ds_read_b128 {vr(vK[0],4)}, v{vKa}
    s_mov_b64 exec, s[40:41]
    ds_read_b128 {vr(vV[0],4)}, v{vVa}
    ds_read_b128 {vr(vV[0]+4,4)}, v{vVa} offset:512
    s_mov_b64 exec, -1
    ds_read_b128 {vr(vK[1],4)}, v{vKa} offset:1024
    s_waitcnt lgkmcnt(3)
    v_mfma_f32_32x32x16_bf16 {vr(vS[0],16)}, {vr(vK[0],4)}, {vr(vQ,4)}, {vr(vNM,16)}
    """)
    for i in range(64):
        if i==6:
            a("""
            s_cmp_lg_u32 s42, 0
            s_cbranch_scc1 K2_NOBAR
            s_waitcnt vmcnt(0)
            s_barrier
            K2_NOBAR:
            """)
        tile_body(a, i, last=(i==63), nxt2=(i<62))
    a(f"""
    s_nop 7
    s_nop 3
    v_add_f32 v104, abs(v{vO}), abs(v{vO+1})
    v_add_f32 v105, abs(v{vO+2}), abs(v{vO+3})
    v_add_f32 v106, abs(v{vO+4}), abs(v{vO+5})
    v_add_f32 v107, abs(v{vO+6}), abs(v{vO+7})
    v_add_f32 v104, v104, v105
    v_add_f32 v106, v106, v107
    v_add_f32 v104, v104, v106
    v_mov_b32 v105, {f32(2.0**120)}
    v_mov_b32 v106, {f32(2.0**100)}
    v_mov_b32 v107, {f32(2.0**-100)}
    v_cmp_lt_f32 s[44:45], v104, v105
    v_cmp_lt_f32 s[46:47], v{vO+8}, v106
    v_cmp_gt_f32 s[48:49], v{vO+8}, v107
    s_and_b64 s[44:45], s[44:45], s[46:47]
    s_and_b64 s[44:45], s[44:45], s[48:49]
    s_cmp_eq_u64 s[44:45], -1
    s_cbranch_scc1 K2_FIN
    s_cmp_lg_u32 s42, 0
    s_cbranch_scc1 K2_FIN
    s_mov_b32 s42, 1
    v_mov_b32 v104, 0xff800000
    v_mov_b32 v105, v{vKa}
    s_mov_b32 s43, 64
    K2_MAXLOOP:
    ds_read_b128 {vr(vK[0],4)}, v105
    v_add_u32 v105, 1024, v105
    s_waitcnt lgkmcnt(0)
    v_mfma_f32_32x32x16_bf16 {vr(vS[0],16)}, {vr(vK[0],4)}, {vr(vQ,4)}, 0
    """)
    for k in range(8): a(f"v_max3_f32 v104, v104, v{vS[0]+2*k}, v{vS[0]+2*k+1}")
    a(f"""
    s_sub_u32 s43, s43, 1
    s_cmp_lg_u32 s43, 0
    s_cbranch_scc1 K2_MAXLOOP
    v_mov_b32 v105, v104
    v_permlane32_swap_b32 v104, v105
    v_max_f32 v104, v104, v105
    """)
    for r in range(16): a(f"v_sub_f32 v{vNM+r}, 0, v104")
    a(f"""
    s_branch K2_MAIN
    K2_FIN:
    v_rcp_f32 v104, v{vO+8}
    s_lshl_b32 s33, s28, 15
    s_lshl_b32 s34, s25, 10
    s_add_u32 s33, s33, s34
    s_add_u32 s33, s33, {OF}
    """)
    for r in range(8): a(f"v_mul_f32 v{vO+r}, v{vO+r}, v104")
    for r in range(4): a(f"v_cvt_pk_bf16_f32 v{vP+r}, v{vO+2*r}, v{vO+2*r+1}")
    a(f"buffer_store_dwordx4 {vr(vP,4)}, v{vKa}, s[20:23], s33 offen")
    a("K2_END:\ns_endpgm")
    return a.l, dict(vgpr=108, sgpr=64, grid=256, block=512, lds=131072)

def k3():
    a=A()
    a("""
    s_cmp_ge_u32 s2, 256
    s_cbranch_scc1 K3_END
    s_load_dwordx2 s[4:5], s[0:1], 16
    s_load_dwordx2 s[6:7], s[0:1], 104
    s_load_dwordx2 s[8:9], s[0:1], 120
    v_lshrrev_b32 v2, 6, v0
    v_and_b32 v1, 63, v0
    v_readfirstlane_b32 s24, v2
    s_waitcnt lgkmcnt(0)
    """)
    srd(a,12,4,512*512*2); srd(a,16,6,0x200000); srd(a,20,8,WS_SIZE)
    a(f"""
    s_and_b32 s25, s2, 7
    s_lshl_b32 s25, s25, 2
    s_bfe_u32 s26, s2, 0x20003
    s_add_u32 s25, s25, s26
    s_lshr_b32 s26, s2, 5
    v_lshlrev_b32 v2, 4, v1             ; lane*16
    v_lshrrev_b32 v3, 3, v1
    v_lshlrev_b32 v3, 10, v3
    v_bfe_u32 v4, v1, 4, 1
    v_lshlrev_b32 v4, 2, v4
    v_xor_b32 v4, v4, v1
    v_and_b32 v4, 7, v4
    v_lshl_add_u32 v3, v4, 4, v3
    v_lshrrev_b32 v5, 3, v1
    v_lshlrev_b32 v5, 12, v5
    v_lshl_add_u32 v5, v4, 4, v5
    s_lshl_b32 s27, s25, 16
    s_add_u32 s27, s27, {OF}            ; o base
    s_lshl_b32 s28, s26, 7
    s_lshl_b32 s29, s24, 10             ; w*1024
    s_add_u32 s30, s27, s29
    s_lshl_b32 s31, s24, 13             ; w*8 rows*1024
    s_add_u32 s31, s31, s28
    """)
    for c in range(4):
        for tt in range(2):
            for h in range(2):
                off=tt*32768+c*8192+h*4096
                a(f"s_add_u32 m0, s29, {off}\ns_add_u32 s33, s30, {off}\nbuffer_load_dwordx4 v2, s[20:23], s33 offen lds")
        for p in range(4):
            a(f"s_add_u32 m0, s29, {65536+c*16384+p*4096}\ns_add_u32 s33, s31, {(128*c+32*p)*1024}\nbuffer_load_dwordx4 v3, s[12:15], s33 offen lds")
    a(f"""
    s_lshl_b32 s34, s26, 18             ; dt*64*4096
    s_lshl_b32 s35, s25, 7              ; tt*128
    s_add_u32 s34, s34, s35
    s_lshl_b32 s35, s24, 15             ; w*8*4096
    s_add_u32 s34, s34, s35
    s_add_u32 s34, s34, {BT}
    s_add_u32 s35, s34, {32*4096}
    s_add_u32 m0, s29, 131072
    s_nop 0
    buffer_load_dwordx4 v5, s[20:23], s34 offen lds
    s_add_u32 m0, s29, {131072+4096}
    s_nop 0
    buffer_load_dwordx4 v5, s[20:23], s35 offen lds
    s_and_b32 s36, s24, 1
    s_lshr_b32 s37, s24, 1
    v_and_b32 v6, 31, v1
    v_lshlrev_b32 v7, 2, v6
    s_lshl_b32 s38, s25, 8
    s_lshl_b32 s39, s36, 7
    s_add_u32 s38, s38, s39
    s_add_u32 s38, s38, {G}
    buffer_load_dword v8, v7, s[20:23], s38 offen
    s_lshl_b32 s39, s36, 15
    v_add_u32 v9, s39, v2
    v_lshrrev_b32 v10, 5, v1            ; hi
    v_bfe_u32 v11, v1, 2, 2             ; r
    v_lshl_add_u32 v12, v10, 2, v11
    v_lshlrev_b32 v12, 7, v12           ; row*128
    v_lshrrev_b32 v13, 1, v11
    v_xor_b32 v14, s37, v13
    v_lshl_add_u32 v14, v14, 6, v12
    v_bfe_u32 v15, v1, 4, 1
    v_lshlrev_b32 v15, 5, v15
    v_and_b32 v16, 3, v1
    v_lshl_add_u32 v15, v16, 3, v15     ; nh*32+cq*8
    v_add_u32 v14, v14, v15
    v_add_u32 v14, 65536, v14
    v_xor_b32 v17, s36, v13
    v_lshl_add_u32 v17, v17, 6, v12
    v_add_u32 v17, v17, v15
    s_lshl_b32 s39, s37, 12
    s_add_u32 s39, s39, 131072
    v_add_u32 v17, s39, v17
    """)
    ACC=32
    for r in range(16): a(f"v_mov_b32 v{ACC+r}, 0")
    FR=48
    for c in range(4):
        a(f"s_waitcnt vmcnt({8*(3-c)+3})\ns_barrier")
        for s in range(8):
            h=8*c+s
            a(f"ds_read_b128 {vr(FR+8*s,4)}, v9 offset:{h*1024}")
            a(f"ds_read_b64_tr_b16 {vr(FR+8*s+4,2)}, v14 offset:{h*2048}")
            a(f"ds_read_b64_tr_b16 {vr(FR+8*s+6,2)}, v14 offset:{h*2048+1024}")
            if s>=3:
                a(f"s_waitcnt lgkmcnt(9)")
                k=s-3
                a(f"v_mfma_f32_32x32x16_bf16 {vr(ACC,16)}, {vr(FR+8*k+4,4)}, {vr(FR+8*k,4)}, {vr(ACC,16)}")
        for k in range(5,8):
            a(f"s_waitcnt lgkmcnt({3*(7-k)})")
            a(f"v_mfma_f32_32x32x16_bf16 {vr(ACC,16)}, {vr(FR+8*k+4,4)}, {vr(FR+8*k,4)}, {vr(ACC,16)}")
    a("s_waitcnt vmcnt(0)\ns_barrier")
    for g in range(4): a(f"ds_read_b64_tr_b16 {vr(FR+2*g,2)}, v17 offset:{g*1024}")
    a(f"""
    v_sub_f32 v18, 1.0, v8
    v_cvt_pk_bf16_f32 v18, v18, v18
    s_mov_b32 s40, 0xffff0000
    v_and_b32 v18, s40, v18             ; 1-g (bf16)
    v_lshlrev_b32 v19, 10, v6
    v_lshl_add_u32 v19, v10, 3, v19
    s_lshl_b32 s41, s25, 16
    s_lshl_b32 s42, s36, 15
    s_add_u32 s41, s41, s42
    s_lshl_b32 s42, s37, 6
    s_add_u32 s41, s41, s42
    s_add_u32 s41, s41, s28
    s_waitcnt lgkmcnt(0)
    """)
    for g in range(4):
        for k in range(2):
            b=FR+2*g+k; r=ACC+4*g+2*k
            a(f"""
            v_lshlrev_b32 v20, 16, v{b}
            v_and_b32 v21, s40, v{b}
            v_mul_f32 v20, v18, v20
            v_mul_f32 v21, v18, v21
            v_fma_f32 v20, v8, v{r}, v20
            v_fma_f32 v21, v8, v{r+1}, v21
            v_cvt_pk_bf16_f32 v{FR+16+2*g+k}, v20, v21
            """)
        a(f"buffer_store_dwordx2 {vr(FR+16+2*g,2)}, v19, s[16:19], s41 offen offset:{16*g}")
    a("K3_END:\ns_endpgm")
    return a.l, dict(vgpr=112, sgpr=64, grid=256, block=256, lds=131072+8192)
```

```python
import sys, importlib
from asmlib import *
import ka as KA, k1 as K1, k2 as K2, k2d as K2B
NAME="gated_mix__softmax_full_mha__ssm_conv_s4__prompt"
def build(kernels, outfn):
    ref=open(f"cdna_kernels/{NAME}.s.ref").read().split('\n')
    hdr=[l for l in ref if l.startswith(';') and '@launch' not in l and 'Override launch' not in l and 'grid=ceil' not in l]
    out=hdr[:]
    for n,(l,m) in kernels: out.append(f"; @launch kernel={n} grid=({m['grid']},1,1) block=({m['block']},1,1) lds={m['lds']}")
    out+=['.amdgcn_target "amdgcn-amd-amdhsa--gfx950"','.text']
    for n,(l,m) in kernels:
        rep=[]
        pl=pad(l,rep)
        print(n, "instrs", len(pl), "pads", len(rep), file=sys.stderr)
        if '-v' in sys.argv:
            for r in rep: print("   pad",r, file=sys.stderr)
        out+=[f".globl {n}",".p2align 8",f".type {n},@function",f"{n}:"]+pl
    out+=['.section .rodata,"a"']
    for n,(l,m) in kernels:
        v=m['vgpr']
        out+=[".p2align 6",f".amdhsa_kernel {n}",f"  .amdhsa_next_free_vgpr {v}",f"  .amdhsa_next_free_sgpr {m['sgpr']}",
              f"  .amdhsa_accum_offset {(v+3)//4*4}","  .amdhsa_group_segment_fixed_size 0","  .amdhsa_kernarg_size 128",
              "  .amdhsa_user_sgpr_count 2","  .amdhsa_user_sgpr_kernarg_segment_ptr 1","  .amdhsa_system_sgpr_workgroup_id_x 1",".end_amdhsa_kernel"]
    open(outfn,'w').write('\n'.join(out)+'\n')
if __name__=="__main__":
    build([("k1_kernel",KA.ka()),("k2_kernel",K2B.k2()),("k3_kernel",K2.k3())], (sys.argv[1] if len(sys.argv)>1 and sys.argv[1].endswith(".s") else f"cdna_kernels/{NAME}.s"))
```

```python
import re
TRANS = ("v_exp_f32","v_log_f32","v_rcp_f32","v_rsq_f32","v_sqrt_f32","v_sin_f32","v_cos_f32","v_exp_f16","v_rcp_iflag_f32")
def regs_of(tok):
    tok = tok.strip()
    tok = re.sub(r'^-', '', tok)
    m = re.match(r'^(?:abs|neg)\((.*)\)$', tok)
    if m: tok = m.group(1)
    m = re.match(r'^\|(.*)\|$', tok)
    if m: tok = m.group(1)
    m = re.match(r'^([vsa])\[(\d+):(\d+)\]$', tok)
    if m: return [(m.group(1), i) for i in range(int(m.group(2)), int(m.group(3))+1)]
    m = re.match(r'^([vsa])(\d+)$', tok)
    if m: return [(m.group(1), int(m.group(2)))]
    if tok in ('vcc','vcc_lo','vcc_hi'): return [('vcc',0)]
    if tok in ('exec','exec_lo','exec_hi'): return [('exec',0)]
    if tok == 'm0': return [('m0',0)]
    return []
def split_ops(s):
    out=[]; d=0; cur=''
    for ch in s:
        if ch in '[(': d+=1
        if ch in '])': d-=1
        if ch==',' and d==0: out.append(cur.strip()); cur=''
        else: cur+=ch
    if cur.strip(): out.append(cur.strip())
    return out
class Ins:
    def __init__(self, text):
        self.text = text
        t = text.split(';')[0].strip()
        self.label = t.endswith(':')
        self.op = ''; self.dst=[]; self.src=[]; self.kind='other'; self.srcC=[]; self.passes=0
        self.nops = 1
        if not t or self.label or t.startswith('.'):
            self.kind='none'; self.nops=0; return
        p = t.split(None,1); self.op = op = p[0]
        rest = p[1] if len(p)>1 else ''
        ops = split_ops(rest)
        if ops:
            last = ops[-1].split()
            mods = last[1:]; ops[-1] = last[0] if last else ''
        else: mods=[]
        self.mods = ' '.join(mods)
        R = [regs_of(o) for o in ops]
        flat = lambda L: [r for x in L for r in x]
        if op == 's_nop': self.kind='nop'; self.nops=int(ops[0],0)+1; return
        if op.startswith('v_mfma') or op.startswith('v_smfmac'):
            self.kind='mfma'; self.dst=R[0]; self.src=R[1]+R[2]; self.srcC=R[3]
            self.passes = 8 if '32x32x16' in op else 4 if '16x16x32' in op else 16
            return
        if op.startswith('v_'):
            self.kind = 'trans' if op.replace('_e32','').replace('_e64','') in TRANS else 'valu'
            if op.startswith('v_cmp'):
                self.dst=R[0]; self.src=flat(R[1:])
            elif op.startswith('v_permlane') and 'swap' in op:
                self.dst=R[0]+R[1]; self.src=R[0]+R[1]
            elif op in ('v_add_co_u32','v_sub_co_u32','v_addc_co_u32','v_subb_co_u32','v_add_co_u32_e32','v_addc_co_u32_e32'):
                self.dst=R[0]+R[1]; self.src=flat(R[2:])
            else:
                self.dst=R[0]; self.src=flat(R[1:])
                if op.startswith('v_fmac') or op.startswith('v_dot2c') or 'dpp' in op or 'row_' in self.mods or 'UNUSED_PRESERVE' in self.mods: self.src=self.src+R[0]
            self.dpp = ('dpp' in op) or ('row_' in self.mods) or ('quad_perm' in self.mods)
            return
        if op.startswith('ds_'):
            self.kind='ds'
            if op.startswith('ds_read') or op.startswith('ds_bpermute') or op.startswith('ds_swizzle') or op.startswith('ds_permute'):
                self.dst=R[0]; self.src=flat(R[1:])
            else: self.src=flat(R)
            return
        if op.startswith('buffer_') or op.startswith('global_'):
            self.kind='vmem'
            self.lds = (' lds' in ' '+self.mods) or ('_lds_' in op)
            if 'load' in op and not self.lds:
                self.dst=R[0]; self.src=flat(R[1:])
            else: self.src=flat(R)
            self.wide_store = ('store' in op) and ('x4' in op or 'x3' in op)
            if self.wide_store:
                self.sdata = R[0] if op.startswith('buffer_') else R[1]
            return
        if op.startswith('s_'):
            self.kind='salu'
            if op.startswith('s_cmp') or op.startswith('s_cbranch') or op in ('s_branch','s_waitcnt','s_barrier','s_endpgm','s_setprio','s_sleep'):
                self.src=flat(R)
            else:
                self.dst=R[0] if R else []; self.src=flat(R[1:])
                if 'saveexec' in op: self.dst=self.dst+[('exec',0)]
            return
def need(prev, cur):
    n=0
    ov = lambda a,b: bool(set(a)&set(b))
    pv = prev.kind in ('valu','trans'); cv = cur.kind in ('valu','trans')
    pdv = [r for r in prev.dst if r[0] in 'va']
    pds = [r for r in prev.dst if r[0] in ('s','vcc')]
    if pv:
        if cur.kind=='mfma' and ov(pdv, cur.src+cur.srcC): n=max(n,2)
        if prev.kind=='trans' and cur.kind=='valu' and ov(pdv,cur.src): n=max(n,1)
        if cv and ov(pds,cur.src): n=max(n,4 if 'lane' in cur.op else 2)
        if cv and cur.op.startswith('v_cndmask') and ('vcc',0) in pds: n=max(n,2)
        if cur.kind=='vmem' and ov(pds,cur.src): n=max(n,5)
        if cur.kind=='salu' and ov(pds,cur.src): n=max(n,1)
        if cv and getattr(cur,'dpp',False) and ov(pdv,cur.src): n=max(n,2)
        if cv and cur.op.startswith('v_permlane') and ov(pdv,cur.src): n=max(n,2)
        if cv and (cur.op.startswith('v_readlane') or cur.op.startswith('v_readfirstlane')) and ov(pdv,cur.src): n=max(n,1)
        if ('op_sel' in prev.mods and not prev.op.startswith('v_pk')) or 'sdwa' in prev.op:
            if cv and ov(pdv,cur.src+cur.dst): n=max(n,1)
    if prev.kind=='mfma':
        big = {4:8,8:12,16:20}[prev.passes]; part={4:6,8:10,16:18}[prev.passes]; war={4:3,8:7,16:15}[prev.passes]
        if cur.kind=='mfma':
            if ov(prev.dst,cur.src): n=max(n,big)
            if ov(prev.dst,cur.srcC) and not (prev.dst==cur.srcC and prev.passes==cur.passes): n=max(n,part)
            if ov(prev.dst,cur.dst) and not (prev.dst==cur.srcC): n=max(n,part)
        elif cur.kind in ('valu','trans','ds','vmem'):
            if ov(prev.dst,cur.src+cur.dst): n=max(n,big)
            if ov(prev.srcC,cur.dst) : n=max(n,war)
    if prev.kind=='salu' and ('m0',0) in prev.dst and cur.kind=='vmem' and cur.lds: n=max(n,1)
    if prev.kind=='vmem' and getattr(prev,'wide_store',False) and ov(prev.sdata,cur.dst): n=max(n,2)
    return n
def pad(lines, report=None):
    out=[]; hist=[]
    for ln in lines:
        cur=Ins(ln)
        if cur.kind=='none': out.append(ln); continue
        req=0; dist=0
        for p in reversed(hist):
            r=need(p,cur)-dist
            if r>req: req=r
            dist+=p.nops
            if dist>=20: break
        if req>0:
            if report is not None: report.append((req,ln.strip()))
            k=req
            while k>0:
                c=min(k,16); nl=f"    s_nop {c-1}"; out.append(nl); hist.append(Ins(nl)); k-=c
        out.append(ln); hist.append(cur)
        if len(hist)>40: hist=hist[-30:]
    return out
def check_loop(body):
    rep=[]; pad(body+body, rep); return rep
class A:
    def __init__(self): self.l=[]
    def __call__(self, s):
        for x in s.strip('\n').split('\n'):
            x=x.strip()
            if not x: continue
            self.l.append(x if x.endswith(':') or x.startswith('.') else '    '+x)
    def ext(self, lines): self.l.extend(lines)
def vr(b,n=1): return f"v{b}" if n==1 else f"v[{b}:{b+n-1}]"
def sr(b,n=1): return f"s{b}" if n==1 else f"s[{b}:{b+n-1}]"

import os
STAMP = os.environ.get("STAMP","")!=""
DBGOFF=0x1200000
def stamp(a,k,real=False):
    if not STAMP: return
    a(f"s_waitcnt lgkmcnt(0)\ns_mem{'real' if real else ''}time s[{72+2*k}:{73+2*k}]\ns_waitcnt lgkmcnt(0)")
def stamp_out(a, kid, nw, srd=20, wave=24, n=12):
    if not STAMP: return
    stamp(a,n-2); stamp(a,n-1,real=True)
    a(f"""
    s_mov_b64 exec, 1
    s_mul_i32 s70, s2, {nw}
    s_add_u32 s70, s70, s{wave}
    s_lshl_b32 s70, s70, 7
    s_add_u32 s70, s70, {DBGOFF+kid*0x100000}
    s_getreg_b32 s71, hwreg(HW_REG_HW_ID)
    v_mov_b32 v2, 0
    """)
    for k in range(0,2*n,4):
        for j in range(4): a(f"v_mov_b32 v{4+j}, s{72+k+j}")
        a(f"buffer_store_dwordx4 v[4:7], v2, s[{srd}:{srd+3}], s70 offen offset:{k*4}")
        a("s_nop 1")
    a(f"s_getreg_b32 s72, hwreg(HW_REG_XCC_ID)")
    a(f"v_mov_b32 v4, s71\nv_mov_b32 v5, s72\nbuffer_store_dwordx2 v[4:5], v2, s[{srd}:{srd+3}], s70 offen offset:{8*n}")
```

```python
from asmlib import *
import math, struct
QF=0x000000; KF=0x200000; VF=0x400000; OF=0x600000; XT=0x800000; KR=0xA00000; BT=0xF00000; G=0x1100000
WS_SIZE=0x1800000
KRC=0x2200; KRS=0x1100
def f32(x): return "0x%08x"%struct.unpack('<I',struct.pack('<f',x))[0]
LOG2E=math.log2(math.e)
def srd(a, d, b, size):
    a(f"s_mov_b32 s{d}, s{b}\ns_and_b32 s{d+1}, s{b+1}, 0xffff\ns_mov_b32 s{d+2}, {hex(size)}\ns_mov_b32 s{d+3}, 0x00020000")

def gemm(a):
    srd(a,12,4,0x200000); srd(a,16,6,512*1536*2); srd(a,20,8,WS_SIZE)
    a("""
    s_and_b32 s30, s2, 7
    s_lshr_b32 s31, s2, 3
    s_lshr_b32 s25, s30, 1
    s_lshl_b32 s25, s25, 2
    s_and_b32 s32, s31, 3
    s_add_u32 s25, s25, s32          ; rt
    s_and_b32 s26, s30, 1
    s_lshl_b32 s26, s26, 3
    s_lshr_b32 s32, s31, 2
    s_add_u32 s26, s26, s32          ; ct
    s_lshl_b32 s27, s25, 17
    s_lshl_b32 s28, s26, 6
    s_lshl_b32 s29, s24, 11
    """)
    vL=1; vXo=2; vWo=3; vXr=[4,5]; vWr=6; vXrB=[7,8]; vWrB=9; vT=10; vT2=11; vT3=12
    a(f"""
    v_lshrrev_b32 v{vT}, 2, v{vL}               ; l>>2
    s_lshl_b32 s32, s24, 5
    v_add_u32 v{vT}, s32, v{vT}                 ; w*32 + (l>>2)
    v_lshlrev_b32 v{vXo}, 10, v{vT}
    v_lshrrev_b32 v{vT}, 4, v{vL}
    v_xor_b32 v{vT}, v{vT}, v{vL}
    v_and_b32 v{vT}, 3, v{vT}
    v_lshl_add_u32 v{vXo}, v{vT}, 4, v{vXo}
    v_mul_u32_u24 v{vT}, 43, v{vL}
    v_lshrrev_b32 v{vT}, 9, v{vT}               ; l/12
    v_mul_u32_u24 v{vT2}, 12, v{vT}
    v_sub_u32 v{vT2}, v{vL}, v{vT2}             ; l%12
    v_mul_u32_u24 v{vWo}, 3072, v{vT}
    v_lshrrev_b32 v{vT3}, 2, v{vT2}
    v_lshl_add_u32 v{vWo}, v{vT3}, 10, v{vWo}
    v_and_b32 v{vT3}, 3, v{vT2}
    v_lshl_add_u32 v{vWo}, v{vT3}, 4, v{vWo}
    s_mul_i32 s32, s24, 24576
    v_add_u32 v{vWo}, s32, v{vWo}
    v_mov_b32 v{vT3}, 0x40000000
    v_cmp_lt_u32 vcc, 47, v{vL}
    v_cndmask_b32 v{vWo}, v{vWo}, v{vT3}, vcc
    """)
    def issue(c):
        slot=c%5
        a(f"""
        s_add_u32 s33, s27, {64*c}
        s_add_u32 m0, s29, {slot*16384}
        s_add_u32 s34, s27, {64*c+16384}
        buffer_load_dwordx4 v{vXo}, s[12:15], s33 offen lds
        s_add_u32 m0, s29, {slot*16384+1024}
        s_add_u32 s35, s28, {c*98304}
        buffer_load_dwordx4 v{vXo}, s[12:15], s34 offen lds
        s_add_u32 m0, s29, {slot*16384+8192}
        s_add_u32 s36, s28, {c*98304+12288}
        buffer_load_dwordx4 v{vWo}, s[16:19], s35 offen lds
        s_add_u32 m0, s29, {slot*16384+8192+1024}
        s_nop 0
        buffer_load_dwordx4 v{vWo}, s[16:19], s36 offen lds
        """)
    import os
    if 'P' in os.environ.get("OPT1",""):
        a(f"""
        s_lshr_b32 s33, s30, 1
        s_lshl_b32 s33, s33, 19
        s_lshl_b32 s34, s31, 14
        s_add_u32 s33, s33, s34
        v_lshlrev_b32 v13, 6, v0
        buffer_load_dword v14, v13, s[12:15], s33 offen
        v_mul_u32_u24 v13, 2731, v0
        v_lshrrev_b32 v13, 16, v13          ; t/24
        v_mul_u32_u24 v15, 24, v13
        v_sub_u32 v15, v0, v15              ; t%24
        v_mul_u32_u24 v13, 3072, v13
        v_lshrrev_b32 v14, 3, v15
        v_lshl_add_u32 v13, v14, 10, v13
        v_and_b32 v15, 7, v15
        v_lshl_add_u32 v13, v15, 6, v13
        s_and_b32 s33, s30, 1
        s_lshl_b32 s33, s33, 9
        s_mul_i32 s34, s31, {16*3072}
        s_add_u32 s33, s33, s34
        s_add_u32 s34, s33, {8*3072}
        v_cmp_gt_u32 vcc, 192, v0
        s_and_saveexec_b64 s[36:37], vcc
        buffer_load_dword v14, v13, s[16:19], s33 offen
        buffer_load_dword v14, v13, s[16:19], s34 offen
        s_mov_b64 exec, s[36:37]
        """)
    for c in range(4): issue(c)
    stamp(a,2)
    a(f"""
    v_and_b32 v{vT}, 31, v{vL}                  ; row
    v_lshrrev_b32 v{vT2}, 5, v{vL}              ; hi
    v_lshrrev_b32 v{vT3}, 2, v{vT}
    v_xor_b32 v{vT3}, v{vT3}, v{vT2}
    v_and_b32 v{vT3}, 3, v{vT3}                 ; (hi ^ f)
    v_lshlrev_b32 v{vXr[0]}, 6, v{vT}
    v_lshl_add_u32 v{vXr[0]}, v{vT3}, 4, v{vXr[0]}
    v_add_u32 v{vXr[0]}, s29, v{vXr[0]}
    v_xor_b32 v{vXr[1]}, 32, v{vXr[0]}
    v_add_u32 v{vXrB[0]}, 49152, v{vXr[0]}
    v_add_u32 v{vXrB[1]}, 49152, v{vXr[1]}
    v_lshlrev_b32 v{vWr}, 11, v{vT2}            ; hi*2048
    v_bfe_u32 v{vT}, v{vL}, 2, 2                ; r
    v_mul_u32_u24 v{vT}, 192, v{vT}
    v_add_u32 v{vWr}, v{vWr}, v{vT}
    v_bfe_u32 v{vT}, v{vL}, 4, 1                ; nh
    v_lshl_add_u32 v{vWr}, v{vT}, 5, v{vWr}
    v_and_b32 v{vT}, 3, v{vL}
    v_lshl_add_u32 v{vWr}, v{vT}, 3, v{vWr}
    v_add_u32 v{vWr}, 8192, v{vWr}
    v_add_u32 v{vWrB}, 49152, v{vWr}
    """)
    ACC=[16,32,48]
    for r in range(16,64): a(f"v_mov_b32 v{r}, 0")
    SET=[64,96]
    def reads(c):
        slot=c%5; st=SET[c&1]
        big = slot>=3
        off = slot*16384 - (49152 if big else 0)
        xr = vXrB if big else vXr; wr = vWrB if big else vWr
        for s in range(2):
            a(f"ds_read_b128 {vr(st+4*s,4)}, v{xr[s]} offset:{off}")
            for seg in range(3):
                for q in range(2):
                    a(f"ds_read_b64_tr_b16 {vr(st+8+(s*3+seg)*4+2*q,2)}, v{wr} offset:{off+s*4096+q*1024+seg*64}")
    def mfmas(c):
        st=SET[c&1]
        for s in range(2):
            x=vr(st+4*s,4)
            for seg in range(3):
                w=vr(st+8+(s*3+seg)*4,4); d=vr(ACC[seg],16)
                if seg<2: a(f"v_mfma_f32_32x32x16_bf16 {d}, {w}, {x}, {d}")
                else: a(f"v_mfma_f32_32x32x16_bf16 {d}, {x}, {w}, {d}")
    for c in range(16):
        a(f"s_waitcnt vmcnt({4*min(3,15-c)})\ns_barrier")
        if c in (0,4,8,12): stamp(a,3+c//4)
        reads(c)
        if c+4<16: issue(c+4)
        if c>0: mfmas(c-1)
        a("s_waitcnt lgkmcnt(0)")
    mfmas(15)
    stamp(a,7)
    a(f"""
    s_lshl_b32 s33, s25, 2
    s_add_u32 s33, s33, s24
    s_lshl_b32 s33, s33, 10          ; tile*1024
    s_lshl_b32 s34, s26, 17          ; 2ct*65536
    s_add_u32 s33, s33, s34
    s_add_u32 s34, s33, 0x10000
    s_add_u32 s35, s33, {KF}
    s_add_u32 s36, s33, {KF+0x10000}
    s_add_u32 s37, s33, {VF}
    s_mov_b32 s38, {f32(0.25*LOG2E)}
    v_lshlrev_b32 v{vT}, 4, v{vL}               ; lane*16
    v_bfe_u32 v{vT2}, v{vL}, 4, 1
    v_lshlrev_b32 v{vT2}, 16, v{vT2}
    v_lshrrev_b32 v{vT3}, 5, v{vL}
    v_lshl_add_u32 v{vT2}, v{vT3}, 8, v{vT2}
    v_and_b32 v{vT3}, 15, v{vL}
    v_lshl_add_u32 v{vT2}, v{vT3}, 4, v{vT2}    ; V voffset
    """)
    for r in range(16): a(f"v_mul_f32 v{ACC[0]+r}, s38, v{ACC[0]+r}")
    for seg in range(3):
        for i in range(8): a(f"v_cvt_pk_bf16_f32 v{64+seg*8+i}, v{ACC[seg]+2*i}, v{ACC[seg]+2*i+1}")
    a(f"""
    buffer_store_dwordx4 v[64:67], v{vT}, s[20:23], s33 offen
    buffer_store_dwordx4 v[68:71], v{vT}, s[20:23], s34 offen
    buffer_store_dwordx4 v[72:75], v{vT}, s[20:23], s35 offen
    buffer_store_dwordx4 v[76:79], v{vT}, s[20:23], s36 offen
    buffer_store_dwordx4 v[80:83], v{vT2}, s[20:23], s37 offen
    buffer_store_dwordx4 v[84:87], v{vT2}, s[20:23], s37 offen offset:512
    """)
    stamp_out(a,0,4)
    a("s_endpgm")

def cmul(a, D, A_, B_, T):
    a(f"v_pk_mul_f32 {vr(T,2)}, {vr(A_,2)}, {vr(B_,2)} op_sel:[0,0] op_sel_hi:[0,1]")
    a(f"v_pk_fma_f32 {vr(D,2)}, {vr(A_,2)}, {vr(B_,2)}, {vr(T,2)} op_sel:[1,1,0] op_sel_hi:[1,0,1] neg_lo:[1,0,0]")

def kgen(a):
    vL=1
    a(f"""
    s_lshl_b32 s26, s25, 1
    s_add_u32 s26, s26, s24             ; d
    s_lshl_b32 s27, s26, 8
    v_lshlrev_b32 v2, 2, v{vL}
    v_add_u32 v2, s27, v2
    s_lshl_b32 s27, s26, 1
    v_mov_b32 v3, s27
    global_load_ushort v10, v3, s[52:53]
    global_load_dword v4, v2, s[40:41]
    global_load_dword v5, v2, s[42:43]
    global_load_dword v6, v2, s[44:45]
    global_load_dword v7, v2, s[46:47]
    global_load_dword v8, v2, s[48:49]
    global_load_dword v9, v2, s[50:51]
    global_load_ushort v11, v3, s[54:55]
    s_mul_i32 s28, s24, 30720
    v_lshlrev_b32 v2, 3, v{vL}
    v_add_u32 v2, s28, v2
    v_and_b32 v12, 31, v{vL}
    v_lshrrev_b32 v13, 5, v{vL}
    v_mul_u32_u24 v3, 528, v12
    v_lshl_add_u32 v3, v13, 4, v3
    v_add_u32 v3, s28, v3
    s_mov_b32 s30, {f32(LOG2E)}
    s_mov_b32 s31, {f32(LOG2E-struct.unpack('<f',struct.pack('<f',LOG2E))[0])}
    s_mov_b32 s32, {f32(math.log(2))}
    s_mov_b32 s33, {f32(1/(2*math.pi))}
    s_mov_b32 s34, 0xffff0000
    s_waitcnt vmcnt(7)
    v_lshlrev_b32 v10, 16, v10          ; ld
    v_mul_f32 v14, s30, v10             ; a
    v_exp_f32 v15, v14
    v_fma_f32 v16, v10, s30, -v14
    v_fma_f32 v16, v10, s31, v16
    v_mul_f32 v16, s32, v16
    v_fma_f32 v15, v15, v16, v15
    v_cvt_pk_bf16_f32 v15, v15, v15
    v_and_b32 v15, s34, v15             ; dt
    s_waitcnt vmcnt(1)
    """)
    stamp(a,2)
    S=[20,60]
    for x,b in enumerate(S):
        un = (lambda d,s: a(f"v_lshlrev_b32 v{d}, 16, v{s}")) if x==0 else (lambda d,s: a(f"v_and_b32 v{d}, s34, v{s}"))
        un(b+30,4); un(b+31,5); un(b+32,6); un(b+33,7); un(b+34,8); un(b+35,9)
        a(f"""
        v_mul_f32 v{b+30}, v15, v{b+30}
        v_mul_f32 v{b+31}, v15, v{b+31}
        v_mul_f32 v{b+32}, v15, v{b+32}
        v_mul_f32 v{b+33}, v15, v{b+33}
        v_mul_f32 v{b+0}, s30, v{b+30}
        v_mul_f32 v{b+1}, s33, v{b+31}
        v_mul_f32 v{b+2}, v{b+34}, v{b+32}
        v_mul_f32 v{b+3}, v{b+34}, v{b+33}
        v_fma_f32 v{b+2}, -v{b+35}, v{b+33}, v{b+2}
        v_fma_f32 v{b+3}, v{b+35}, v{b+32}, v{b+3}
        """)
    for (E,k) in ((4,1.0),(6,8.0),(8,256.0)):
        for b in S:
            a(f"""
            v_mul_f32 v{b+30}, {f32(k)}, v{b+0}
            v_mul_f32 v{b+31}, {f32(k)}, v{b+1}
            v_fract_f32 v{b+31}, v{b+31}
            v_exp_f32 v{b+30}, v{b+30}
            v_cos_f32 v{b+32}, v{b+31}
            v_sin_f32 v{b+33}, v{b+31}
            """)
        for b in S:
            a(f"v_mul_f32 v{b+E}, v{b+30}, v{b+32}\nv_mul_f32 v{b+E+1}, v{b+30}, v{b+33}")
    YOFF=25*528
    PK=[100,102,104,106]; pkc=[0]
    def wrX(row, regoff):
        p=PK[pkc[0]%4]; pkc[0]+=1
        for x,b in enumerate(S): a(f"v_cvt_pk_bf16_f32 v{p+x}, v{b+regoff}, -v{b+regoff+1}")
        a(f"ds_write_b64 v2, {vr(p,2)} offset:{row*528}")
    def wrY(j, regoff):
        p=PK[pkc[0]%4]; pkc[0]+=1
        for x,b in enumerate(S): a(f"v_cvt_pk_bf16_f32 v{p+x}, v{b+regoff}, v{b+regoff+1}")
        a(f"ds_write_b64 v2, {vr(p,2)} offset:{YOFF+j*528}")
    def cm(D,A_,B_,T):
        for b in S: a(f"v_pk_mul_f32 {vr(b+T,2)}, {vr(b+A_,2)}, {vr(b+B_,2)} op_sel:[0,0] op_sel_hi:[0,1]")
        for b in S: a(f"v_pk_fma_f32 {vr(b+D,2)}, {vr(b+A_,2)}, {vr(b+B_,2)}, {vr(b+T,2)} op_sel:[1,1,0] op_sel_hi:[1,0,1] neg_lo:[1,0,0]")
    a("v_mov_b32 v108, 0x00003f80\nv_mov_b32 v109, 0x00003f80")
    a(f"ds_write_b64 v2, v[108:109] offset:{YOFF}")
    cm(10,6,6,12)
    wrY(1,6); wrX(0,2); wrY(2,10)
    xops=[]
    cur=2
    sv={0:2}
    holder={0:2,1:36,2:22,3:36,4:24,5:36,6:26,7:36}
    for r in range(1,8):
        xops.append(('cm',holder[r],holder[r-1],4)); xops.append(('wx',r,holder[r]))
    for r,row in ((2,9),(6,13),(0,8),(4,12)):
        xops.append(('cm',holder[r],holder[r],8)); xops.append(('wx',row,holder[r]))
    for row0,row4 in ((10,14),(11,15)):
        xops.append(('cm',holder[0],holder[0],8)); xops.append(('wx',row0,holder[0]))
        xops.append(('cm',holder[4],holder[4],8)); xops.append(('wx',row4,holder[4]))
    for row in (16,17,18,19,24):
        xops.append(('cm',holder[0],holder[0],8)); xops.append(('wx',row,holder[0]))
    yops=[]
    for j in range(3,32):
        if j==3: yops.append(('cm',18,6,10))
        elif j==4: yops.append(('cm',20,10,10))
        else:
            h=18 if j&1 else 20
            yops.append(('cm',h,h,10))
        yops.append(('wy',j,18 if j&1 else 20))
    ix=iy=0
    tsel=[12,14]; tc=0
    while ix<len(xops) or iy<len(yops):
        for lst,which in ((yops,'y'),(xops,'x'),(yops,'y')):
            i = iy if which=='y' else ix
            if i>=len(lst): continue
            o=lst[i]
            if o[0]=='cm': cm(o[1],o[2],o[3],tsel[tc&1]); tc+=1
            elif o[0]=='wx': wrX(o[1],o[2])
            else: wrY(o[1],o[2])
            if which=='y': iy+=1
            else: ix+=1
    stamp(a,3)
    D=112
    for r in range(16): a(f"v_mov_b32 v{D+r}, 0")
    a("s_waitcnt lgkmcnt(0)")
    FR=20
    for half in range(2):
        for s in range(8):
            a(f"ds_read_b128 {vr(FR+8*s,4)}, v3 offset:{(half*8+s)*32}")
            a(f"ds_read_b128 {vr(FR+8*s+4,4)}, v3 offset:{YOFF+(half*8+s)*32}")
        for s in range(8):
            a(f"s_waitcnt lgkmcnt({min(15,14-2*s)})")
            a(f"v_mfma_f32_32x32x16_bf16 {vr(D,16)}, {vr(FR+8*s,4)}, {vr(FR+8*s+4,4)}, {vr(D,16)}")
    stamp(a,4)
    P=296
    a(f"""
    s_waitcnt vmcnt(0)
    v_lshlrev_b32 v11, 16, v11          ; Dskip
    v_cmp_eq_u32 vcc, 0, v{vL}
    v_cndmask_b32 v11, 0, v11, vcc
    v_mul_u32_u24 v4, {4*P}, v13
    v_add_u32 v4, v4, v12
    v_lshlrev_b32 v4, 2, v4
    v_add_u32 v4, s28, v4
    v_sub_u32 v5, 63, v{vL}
    v_lshlrev_b32 v5, 2, v5
    v_add_u32 v5, s28, v5
    v_and_b32 v6, 1, v{vL}
    v_xor_b32 v6, 1, v6
    v_lshl_add_u32 v6, v6, 2, v5
    v_mov_b32 v7, 0
    v_mov_b32 v8, s28
    v_add_f32 v{D}, v{D}, v11
    """)
    AR=[0,1,2,3,256,258,512,768,1024,1280,1536,1792,2048]
    for r,av in enumerate(AR):
        a(f"ds_write_b32 v4, v{D+r} offset:{((av&7)*P+(av>>3)+1)*4}")
    a(f"ds_write_b32 v8, v7 offset:{7*P*4}")
    a("s_waitcnt lgkmcnt(0)")
    def toff(rho,off): return ((off%8)*P+192-64*rho+(off//8)+1)*4
    rd={}
    reg=20
    for rho in (0,1):
        rd[rho]={8:reg,0:reg+1,'t':reg+2}
        a(f"ds_read_b32 v{reg}, v5 offset:{toff(rho,8)}\nds_read_b32 v{reg+1}, v5 offset:{toff(rho,0)}\nds_read_b32 v{reg+2}, v6 offset:{toff(rho,0)}")
        reg+=3
    rd[2]={8:reg,4:reg+1,0:reg+2}
    a(f"ds_read_b32 v{reg}, v5 offset:{toff(2,8)}\nds_read_b32 v{reg+1}, v5 offset:{toff(2,4)}\nds_read_b32 v{reg+2}, v5 offset:{toff(2,0)}")
    reg+=3
    rd[3]={}
    for off in range(-1,9):
        rd[3][off]=reg; a(f"ds_read_b32 v{reg}, v5 offset:{toff(3,off)}"); reg+=1
    a(f"""
    s_mul_i32 s29, s26, {KRC}
    s_add_u32 s29, s29, {KR}
    s_add_u32 s35, s29, {KRS}
    v_lshlrev_b32 v9, 4, v{vL}
    v_cmp_gt_u32 vcc, 32, v{vL}
    v_cmp_gt_u32 s[36:37], 31, v{vL}
    s_waitcnt lgkmcnt(0)
    """)
    t=rd[3]
    a(f"""
    v_cndmask_b32 v{t[7]}, v{t[7]}, v{t[8]}, vcc
    v_cndmask_b32 v{t[5]}, v{t[5]}, v{t[4]}, vcc
    v_cndmask_b32 v{t[3]}, v{t[3]}, v{t[4]}, vcc
    v_cndmask_b32 v{t[1]}, v{t[1]}, v{t[0]}, vcc
    v_cndmask_b32 v{t[-1]}, v{t[-1]}, v{t[0]}, s[36:37]
    """)
    el={}
    for rho in (0,1): r=rd[rho]; el[rho]=[r[8],r[8],r[8],r['t'],r[0],r[0],r[0],r[0],r[0]]
    r=rd[2]; el[2]=[r[8],r[8],r[4],r[4],r[4],r[0],r[0],r[0],r[0]]
    el[3]=[t[7-e] for e in range(9)]
    O=48
    for rho in range(4):
        e=el[rho]
        for i in range(4): a(f"v_cvt_pk_bf16_f32 v{O+rho*8+i}, v{e[2*i]}, v{e[2*i+1]}")
        for i in range(4): a(f"v_cvt_pk_bf16_f32 v{O+rho*8+4+i}, v{e[2*i+1]}, v{e[2*i+2]}")
        a(f"buffer_store_dwordx4 {vr(O+rho*8,4)}, v9, s[20:23], s29 offen offset:{rho*1024}")
        a(f"buffer_store_dwordx4 {vr(O+rho*8+4,4)}, v9, s[20:23], s35 offen offset:{rho*1024}")
    a(f"""
    v_mov_b32 v84, 0
    v_mov_b32 v85, 0
    v_mov_b32 v86, 0
    v_mov_b32 v87, 0
    v_add_u32 v9, 4096, v9
    s_mov_b64 exec, 0xffff
    buffer_store_dwordx4 v[84:87], v9, s[20:23], s29 offen
    buffer_store_dwordx4 v[84:87], v9, s[20:23], s35 offen
    """)
    stamp_out(a,0,4)
    a("s_endpgm")

def xt_gate(a):
    vL=1
    a(f"""
    s_lshl_b32 s26, s25, 1
    s_add_u32 s26, s26, s24
    s_sub_u32 s26, s26, 2               ; tau
    s_lshr_b32 s27, s26, 4              ; tb
    s_and_b32 s28, s26, 15              ; db
    s_lshl_b32 s29, s27, 16
    s_lshl_b32 s30, s28, 6
    s_add_u32 s29, s29, s30
    v_lshrrev_b32 v2, 2, v{vL}
    v_lshlrev_b32 v2, 10, v2
    v_and_b32 v3, 3, v{vL}
    v_lshl_add_u32 v2, v3, 4, v2
    v_add_u32 v2, s29, v2
    v_add_u32 v3, 16384, v2
    v_add_u32 v4, 32768, v2
    v_add_u32 v5, 49152, v2
    global_load_dwordx4 v[16:19], v2, s[4:5]
    global_load_dwordx4 v[20:23], v3, s[4:5]
    global_load_dwordx4 v[24:27], v4, s[4:5]
    global_load_dwordx4 v[28:31], v5, s[4:5]
    v_lshlrev_b32 v6, 4, v{vL}          ; lane*16
    s_lshl_b32 s30, s26, 12             ; 4 rows * 1024
    v_add_u32 v7, s30, v6
    global_load_dwordx4 v[32:35], v6, s[56:57]
    global_load_dwordx4 v[36:39], v7, s[4:5]
    global_load_dwordx4 v[40:43], v7, s[4:5] offset:1024
    global_load_dwordx4 v[44:47], v7, s[4:5] offset:2048
    global_load_dwordx4 v[48:51], v7, s[4:5] offset:3072
    s_lshl_b32 s31, s24, 12
    s_add_u32 s31, s31, {61440-8192}
    v_add_u32 v8, s31, v6
    v_lshrrev_b32 v9, 4, v{vL}          ; g
    v_lshlrev_b32 v10, 9, v9            ; g*8*64
    v_bfe_u32 v11, v{vL}, 2, 2
    v_lshl_add_u32 v10, v11, 6, v10
    v_and_b32 v11, 3, v{vL}
    v_lshl_add_u32 v10, v11, 3, v10
    v_add_u32 v10, s31, v10
    v_and_b32 v11, 15, v{vL}
    v_lshlrev_b32 v11, 12, v11
    v_lshl_add_u32 v11, v9, 4, v11
    s_lshl_b32 s32, s28, 17             ; db*32*4096
    s_lshl_b32 s33, s27, 7              ; tb*64*2
    s_add_u32 s32, s32, s33
    s_add_u32 s32, s32, {XT}
    s_add_u32 s33, s32, 65536
    s_mov_b32 s34, 0xffff0000
    s_waitcnt vmcnt(5)
    ds_write_b128 v8, v[16:19]
    ds_write_b128 v8, v[20:23] offset:1024
    ds_write_b128 v8, v[24:27] offset:2048
    ds_write_b128 v8, v[28:31] offset:3072
    s_waitcnt lgkmcnt(0)
    """)
    k=0
    for dh in range(2):
        for th in range(2):
            for q in range(2):
                a(f"ds_read_b64_tr_b16 {vr(52+k*4+2*q,2)}, v10 offset:{th*2048+q*256+dh*32}")
            k+=1
    a("s_waitcnt lgkmcnt(0)")
    k=0
    for dh in range(2):
        for th in range(2):
            a(f"buffer_store_dwordx4 {vr(52+k*4,4)}, v11, s[20:23], s{32+dh} offen offset:{th*64}")
            k+=1
    a("s_waitcnt vmcnt(4)")
    for i in range(4):
        a(f"v_lshlrev_b32 v{68+2*i}, 16, v{32+i}\nv_and_b32 v{69+2*i}, s34, v{32+i}")
    for rho in range(4):
        src=36+4*rho; acc=100+rho
        for i in range(4):
            a(f"""
            v_lshlrev_b32 v80, 16, v{src+i}
            v_and_b32 v81, s34, v{src+i}
            v_mul_f32 v80, v80, v{68+2*i}
            v_mul_f32 v81, v81, v{69+2*i}
            v_cvt_pk_bf16_f32 v82, v80, v81
            v_lshlrev_b32 v80, 16, v82
            v_and_b32 v81, s34, v82
            """)
            if i==0: a(f"v_add_f32 v{acc}, v80, v81")
            else: a(f"v_add_f32 v{acc}, v{acc}, v80\nv_add_f32 v{acc}, v{acc}, v81")
    for mod in ("row_shr:1","row_shr:2","row_shr:4","row_shr:8"):
        for rho in range(4): a(f"v_add_f32_dpp v{100+rho}, v{100+rho}, v{100+rho} {mod} row_mask:0xf bank_mask:0xf bound_ctrl:0")
    for mod,rm in (("row_bcast:15","0xa"),("row_bcast:31","0xc")):
        for rho in range(4): a(f"v_add_f32_dpp v{100+rho}, v{100+rho}, v{100+rho} {mod} row_mask:{rm} bank_mask:0xf")
    a(f"s_mov_b32 s35, {f32(-LOG2E)}")
    for rho in range(4):
        r=100+rho
        a(f"""
        v_cvt_pk_bf16_f32 v{r}, v{r}, v{r}
        v_and_b32 v{r}, s34, v{r}
        v_mul_f32 v{r}, s35, v{r}
        v_exp_f32 v{r}, v{r}
        v_add_f32 v{r}, 1.0, v{r}
        v_rcp_f32 v{r}, v{r}
        v_cvt_pk_bf16_f32 v{r}, v{r}, v{r}
        v_and_b32 v{r}, s34, v{r}
        """)
    a(f"""
    s_lshl_b32 s36, s26, 4
    s_add_u32 s36, s36, {G}
    v_mov_b32 v2, 0
    s_mov_b32 exec_lo, 0
    s_mov_b32 exec_hi, 0x80000000
    buffer_store_dwordx4 v[100:103], v2, s[20:23], s36 offen
    """)
    stamp_out(a,0,4)
    a("s_endpgm")

def k1():
    a=A()
    a("""
    s_cmp_ge_u32 s2, 512
    s_cbranch_scc1 K1_END
    """)
    stamp(a,0); stamp(a,1,True)
    a("""
    s_load_dwordx4 s[4:7], s[0:1], 0
    s_load_dwordx2 s[8:9], s[0:1], 120
    s_load_dwordx8 s[40:47], s[0:1], 32
    s_load_dwordx8 s[48:55], s[0:1], 64
    s_load_dwordx2 s[56:57], s[0:1], 96
    v_lshrrev_b32 v2, 6, v0
    v_and_b32 v1, 63, v0
    v_readfirstlane_b32 s24, v2
    s_waitcnt lgkmcnt(0)
    s_cmp_ge_u32 s2, 256
    s_cbranch_scc1 K1_MISC
    """)
    gemm(a)
    a("K1_MISC:")
    srd(a,20,8,WS_SIZE)
    a("""
    s_sub_u32 s25, s2, 256
    s_cmp_ge_u32 s24, 2
    s_cbranch_scc1 K1_XT
    """)
    kgen(a)
    a("K1_XT:")
    xt_gate(a)
    a("K1_END:\ns_endpgm")
    return a.l, dict(vgpr=128, sgpr=96, grid=512, block=256, lds=81920)
```

```python
from asmlib import *
from k1 import *

def kc():
    a=A()
    a("""
    s_cmp_ge_u32 s2, 256
    s_cbranch_scc1 KC_END
    """)
    stamp(a,0); stamp(a,1,True)
    a("""
    s_load_dwordx2 s[8:9], s[0:1], 120
    v_lshrrev_b32 v2, 6, v0
    v_and_b32 v1, 63, v0
    v_readfirstlane_b32 s24, v2
    s_waitcnt lgkmcnt(0)
    """)
    srd(a,20,8,WS_SIZE)
    a(f"""
    s_lshr_b32 s25, s24, 1              ; ch
    s_and_b32 s26, s24, 1               ; tile
    s_lshl_b32 s27, s2, 1
    s_add_u32 s27, s27, s25             ; d
    s_mul_i32 s28, s24, 6144
    s_lshl_b32 s29, s27, 12
    s_add_u32 s29, s29, {XT}
    v_lshlrev_b32 v2, 6, v1             ; 64*j
    """)
    for p in range(4):
        a(f"""
        s_add_u32 m0, s28, {p*1536+512}
        s_add_u32 s30, s29, {16*p}
        buffer_load_dwordx4 v2, s[20:23], s30 offen lds
        """)
    a(f"""
    v_mov_b32 v4, 0
    v_mov_b32 v5, 0
    v_mov_b32 v6, 0
    v_mov_b32 v7, 0
    v_and_b32 v8, 31, v1                ; j / i
    v_lshrrev_b32 v9, 5, v1             ; hi
    v_lshlrev_b32 v3, 4, v8
    v_mul_u32_u24 v10, 1536, v9
    v_add_u32 v3, v3, v10
    v_add_u32 v3, s28, v3
    ds_write_b128 v3, v[4:7]
    ds_write_b128 v3, v[4:7] offset:3072
    s_lshl_b32 s30, s26, 9
    s_add_u32 s30, s30, {512-48}
    v_add_u32 v3, s30, v3
    v_lshlrev_b32 v10, 3, v9
    v_sub_u32 v10, v10, v8
    v_add_u32 v10, 2063, v10
    v_and_b32 v11, 1, v10
    v_and_b32 v10, -2, v10
    v_lshlrev_b32 v10, 1, v10
    v_mul_u32_u24 v11, {KRS}, v11
    v_add_u32 v10, v10, v11
    v_subrev_u32 v10, 224, v10
    s_mul_i32 s31, s27, {KRC}
    s_add_u32 s31, s31, {KR}
    s_lshl_b32 s32, s26, 3
    s_add_u32 s32, s32, 8               ; iterations
    """)
    for r in range(16): a(f"v_mov_b32 v{16+r}, 0")
    a("s_waitcnt vmcnt(0) lgkmcnt(0)")
    stamp(a,2)
    a("KC_LOOP:")
    for s in range(8):
        a(f"buffer_load_dwordx4 {vr(32+4*s,4)}, v10, s[20:23], s31 offen offset:{224-32*s}")
        a(f"ds_read_b128 {vr(64+4*s,4)}, v3 offset:{(3072 if s%2==0 else 0)+48-16*(s>>1)}")
    a("v_subrev_u32 v10, 256, v10\nv_subrev_u32 v3, 64, v3")
    for s in range(8):
        a(f"s_waitcnt vmcnt({7-s}) lgkmcnt({7-s})")
        a(f"v_mfma_f32_32x32x16_bf16 v[16:31], {vr(32+4*s,4)}, {vr(64+4*s,4)}, v[16:31]")
    a(f"""
    s_sub_u32 s32, s32, 1
    s_cmp_lg_u32 s32, 0
    s_cbranch_scc1 KC_LOOP
    s_lshl_b32 s33, s27, 12
    s_lshl_b32 s34, s26, 11
    s_add_u32 s33, s33, s34
    s_add_u32 s33, s33, {BT}
    v_lshlrev_b32 v2, 6, v8
    v_lshl_add_u32 v2, v9, 3, v2
    s_nop 7
    """)
    for g in range(4):
        a(f"v_cvt_pk_bf16_f32 v{32+2*g}, v{16+4*g}, v{17+4*g}\nv_cvt_pk_bf16_f32 v{33+2*g}, v{18+4*g}, v{19+4*g}")
        a(f"buffer_store_dwordx2 {vr(32+2*g,2)}, v2, s[20:23], s33 offen offset:{16*g}")
    stamp_out(a,1,4)
    a("KC_END:\ns_endpgm")
    return a.l, dict(vgpr=96, sgpr=96, grid=256, block=256, lds=24576)

vQ=4; vNM=8; vS=[24,40]; vP=56; vO=64; vK=[80,84]; vV=[88,96]; vKa=2; vVa=3
def tile_body(a, i, first=False, last=False, nxt2=True):
    sa=vS[i&1]; sb=vS[(i+1)&1]
    def ex(k): a(f"v_exp_f32 v{sa+k}, v{sa+k}")
    def cv(k): a(f"v_cvt_pk_bf16_f32 v{vP+k}, v{sa+2*k}, v{sa+2*k+1}")
    ex(0); ex(1)
    a("s_waitcnt lgkmcnt(0)")
    if not last:
        a(f"v_mfma_f32_32x32x16_bf16 {vr(sb,16)}, {vr(vK[(i+1)&1],4)}, {vr(vQ,4)}, {vr(vNM,16)}")
        a("s_mov_b64 exec, s[40:41]")
        a(f"ds_read_b128 {vr(vV[(i+1)&1],4)}, v{vVa} offset:{(i+1)*1024}")
        a(f"ds_read_b128 {vr(vV[(i+1)&1]+4,4)}, v{vVa} offset:{(i+1)*1024+512}")
        a("s_mov_b64 exec, -1")
        if nxt2: a(f"ds_read_b128 {vr(vK[i&1],4)}, v{vKa} offset:{(i+2)*1024}")
    ex(2); ex(3); cv(0); ex(4); ex(5); cv(1); ex(6); ex(7); cv(2); ex(8); cv(3); ex(9); ex(10)
    a(f"v_mfma_f32_32x32x16_bf16 {vr(vO,16)}, {vr(vV[i&1],4)}, {vr(vP,4)}, {vr(vO,16)}")
    ex(11); cv(4); ex(12); ex(13); cv(5); ex(14); ex(15); cv(6)
    a("s_nop 0")
    cv(7)
    a(f"v_mfma_f32_32x32x16_bf16 {vr(vO,16)}, {vr(vV[i&1]+4,4)}, {vr(vP+4,4)}, {vr(vO,16)}")

def k2():
    a=A()
    a("""
    s_cmp_ge_u32 s2, 256
    s_cbranch_scc1 K2_END
    """)
    stamp(a,0); stamp(a,1,True)
    a("""
    s_load_dwordx2 s[8:9], s[0:1], 120
    v_lshrrev_b32 v2, 6, v0
    v_and_b32 v1, 63, v0
    v_readfirstlane_b32 s24, v2
    s_waitcnt lgkmcnt(0)
    """)
    srd(a,20,8,WS_SIZE)
    a(f"""
    s_and_b32 s25, s2, 7
    s_lshl_b32 s25, s25, 2
    s_bfe_u32 s26, s2, 0x20003
    s_add_u32 s25, s25, s26             ; head
    s_lshr_b32 s26, s2, 5               ; qtile (256)
    s_lshl_b32 s27, s25, 16             ; head*65536
    s_lshl_b32 s28, s26, 3
    s_add_u32 s28, s28, s24
    s_lshl_b32 s29, s28, 10
    s_add_u32 s29, s29, s27             ; Q offset
    v_lshlrev_b32 v{vKa}, 4, v1
    buffer_load_dwordx4 {vr(vQ,4)}, v{vKa}, s[20:23], s29 offen
    s_lshl_b32 s30, s24, 10             ; wave*1024
    s_add_u32 s31, s27, s30
    s_add_u32 s32, s31, {VF}
    s_add_u32 s31, s31, {KF}
    """)
    for c in range(8):
        a(f"""
        s_add_u32 m0, s30, {c*8192}
        s_add_u32 s33, s31, {c*8192}
        buffer_load_dwordx4 v{vKa}, s[20:23], s33 offen lds
        s_add_u32 m0, s30, {65536+c*8192}
        s_add_u32 s34, s32, {c*8192}
        buffer_load_dwordx4 v{vKa}, s[20:23], s34 offen lds
        """)
    a(f"""
    s_mov_b32 s40, 0x0000ffff
    s_mov_b32 s41, 0x0000ffff
    s_mov_b32 s42, 0
    v_lshrrev_b32 v{vVa}, 5, v1
    v_lshlrev_b32 v{vVa}, 8, v{vVa}
    v_and_b32 v104, 15, v1
    v_lshl_add_u32 v{vVa}, v104, 4, v{vVa}
    v_add_u32 v{vVa}, 65536, v{vVa}
    """)
    for r in range(16): a(f"v_mov_b32 v{vNM+r}, 0")
    for r in range(16): a(f"v_mov_b32 v{vV[0]+r}, 0x3f803f80")
    stamp(a,2)
    a("s_waitcnt vmcnt(14)\ns_barrier")
    stamp(a,3)
    a("K2_MAIN:")
    for r in range(16): a(f"v_mov_b32 v{vO+r}, 0")
    a(f"""
    ds_read_b128 {vr(vK[0],4)}, v{vKa}
    s_mov_b64 exec, s[40:41]
    ds_read_b128 {vr(vV[0],4)}, v{vVa}
    ds_read_b128 {vr(vV[0]+4,4)}, v{vVa} offset:512
    s_mov_b64 exec, -1
    ds_read_b128 {vr(vK[1],4)}, v{vKa} offset:1024
    s_waitcnt lgkmcnt(3)
    v_mfma_f32_32x32x16_bf16 {vr(vS[0],16)}, {vr(vK[0],4)}, {vr(vQ,4)}, {vr(vNM,16)}
    """)
    for i in range(64):
        if i==6:
            a("""
            s_cmp_lg_u32 s42, 0
            s_cbranch_scc1 K2_NOBAR
            s_waitcnt vmcnt(0)
            s_barrier
            K2_NOBAR:
            """)
            stamp(a,4)
        tile_body(a, i, last=(i==63), nxt2=(i<62))
    stamp(a,5)
    a(f"""
    s_nop 7
    s_nop 3
    v_add_f32 v104, abs(v{vO}), abs(v{vO+1})
    v_add_f32 v105, abs(v{vO+2}), abs(v{vO+3})
    v_add_f32 v106, abs(v{vO+4}), abs(v{vO+5})
    v_add_f32 v107, abs(v{vO+6}), abs(v{vO+7})
    v_add_f32 v104, v104, v105
    v_add_f32 v106, v106, v107
    v_add_f32 v104, v104, v106
    v_mov_b32 v105, {f32(2.0**120)}
    v_mov_b32 v106, {f32(2.0**100)}
    v_mov_b32 v107, {f32(2.0**-100)}
    v_cmp_lt_f32 s[44:45], v104, v105
    v_cmp_lt_f32 s[46:47], v{vO+8}, v106
    v_cmp_gt_f32 s[48:49], v{vO+8}, v107
    s_and_b64 s[44:45], s[44:45], s[46:47]
    s_and_b64 s[44:45], s[44:45], s[48:49]
    s_cmp_eq_u64 s[44:45], -1
    s_cbranch_scc1 K2_FIN
    s_cmp_lg_u32 s42, 0
    s_cbranch_scc1 K2_FIN
    s_mov_b32 s42, 1
    v_mov_b32 v104, 0xff800000
    v_mov_b32 v105, v{vKa}
    s_mov_b32 s43, 64
    K2_MAXLOOP:
    ds_read_b128 {vr(vK[0],4)}, v105
    v_add_u32 v105, 1024, v105
    s_waitcnt lgkmcnt(0)
    v_mfma_f32_32x32x16_bf16 {vr(vS[0],16)}, {vr(vK[0],4)}, {vr(vQ,4)}, 0
    """)
    for k in range(8): a(f"v_max3_f32 v104, v104, v{vS[0]+2*k}, v{vS[0]+2*k+1}")
    a(f"""
    s_sub_u32 s43, s43, 1
    s_cmp_lg_u32 s43, 0
    s_cbranch_scc1 K2_MAXLOOP
    v_mov_b32 v105, v104
    v_permlane32_swap_b32 v104, v105
    v_max_f32 v104, v104, v105
    """)
    for r in range(16): a(f"v_sub_f32 v{vNM+r}, 0, v104")
    a(f"""
    s_branch K2_MAIN
    K2_FIN:
    v_rcp_f32 v104, v{vO+8}
    s_lshl_b32 s33, s28, 15
    s_lshl_b32 s34, s25, 10
    s_add_u32 s33, s33, s34
    s_add_u32 s33, s33, {OF}
    """)
    for r in range(8): a(f"v_mul_f32 v{vO+r}, v{vO+r}, v104")
    for r in range(4): a(f"v_cvt_pk_bf16_f32 v{vP+r}, v{vO+2*r}, v{vO+2*r+1}")
    a(f"buffer_store_dwordx4 {vr(vP,4)}, v{vKa}, s[20:23], s33 offen")
    stamp_out(a,2,8)
    a("K2_END:\ns_endpgm")
    return a.l, dict(vgpr=108, sgpr=96, grid=256, block=512, lds=131072)

def k3():
    a=A()
    a("""
    s_cmp_ge_u32 s2, 256
    s_cbranch_scc1 K3_END
    """)
    stamp(a,0); stamp(a,1,True)
    a("""
    s_load_dwordx2 s[4:5], s[0:1], 16
    s_load_dwordx2 s[6:7], s[0:1], 104
    s_load_dwordx2 s[8:9], s[0:1], 120
    v_lshrrev_b32 v2, 6, v0
    v_and_b32 v1, 63, v0
    v_readfirstlane_b32 s24, v2
    s_waitcnt lgkmcnt(0)
    """)
    srd(a,12,4,512*512*2); srd(a,16,6,0x200000); srd(a,20,8,WS_SIZE)
    a(f"""
    s_and_b32 s25, s2, 7
    s_lshl_b32 s25, s25, 2
    s_bfe_u32 s26, s2, 0x20003
    s_add_u32 s25, s25, s26
    s_lshr_b32 s26, s2, 5
    v_lshlrev_b32 v2, 4, v1             ; lane*16
    v_lshrrev_b32 v3, 3, v1
    v_lshlrev_b32 v3, 10, v3
    v_bfe_u32 v4, v1, 4, 1
    v_lshlrev_b32 v4, 2, v4
    v_xor_b32 v4, v4, v1
    v_and_b32 v4, 7, v4
    v_lshl_add_u32 v3, v4, 4, v3
    v_lshrrev_b32 v5, 3, v1
    v_lshlrev_b32 v5, 12, v5
    v_lshl_add_u32 v5, v4, 4, v5
    s_lshl_b32 s27, s25, 16
    s_add_u32 s27, s27, {OF}            ; o base
    s_lshl_b32 s28, s26, 7
    s_lshl_b32 s29, s24, 10             ; w*1024
    s_add_u32 s30, s27, s29
    s_lshl_b32 s31, s24, 13             ; w*8 rows*1024
    s_add_u32 s31, s31, s28
    """)
    for c in range(4):
        for tt in range(2):
            for h in range(2):
                off=tt*32768+c*8192+h*4096
                a(f"s_add_u32 m0, s29, {off}\ns_add_u32 s33, s30, {off}\nbuffer_load_dwordx4 v2, s[20:23], s33 offen lds")
        for p in range(4):
            a(f"s_add_u32 m0, s29, {65536+c*16384+p*4096}\ns_add_u32 s33, s31, {(128*c+32*p)*1024}\nbuffer_load_dwordx4 v3, s[12:15], s33 offen lds")
    a(f"""
    s_lshl_b32 s34, s26, 18             ; dt*64*4096
    s_lshl_b32 s35, s25, 7              ; tt*128
    s_add_u32 s34, s34, s35
    s_lshl_b32 s35, s24, 15             ; w*8*4096
    s_add_u32 s34, s34, s35
    s_add_u32 s34, s34, {BT}
    s_add_u32 s35, s34, {32*4096}
    s_add_u32 m0, s29, 131072
    s_nop 0
    buffer_load_dwordx4 v5, s[20:23], s34 offen lds
    s_add_u32 m0, s29, {131072+4096}
    s_nop 0
    buffer_load_dwordx4 v5, s[20:23], s35 offen lds
    s_and_b32 s36, s24, 1
    s_lshr_b32 s37, s24, 1
    v_and_b32 v6, 31, v1
    v_lshlrev_b32 v7, 2, v6
    s_lshl_b32 s38, s25, 8
    s_lshl_b32 s39, s36, 7
    s_add_u32 s38, s38, s39
    s_add_u32 s38, s38, {G}
    buffer_load_dword v8, v7, s[20:23], s38 offen
    s_lshl_b32 s39, s36, 15
    v_add_u32 v9, s39, v2
    v_lshrrev_b32 v10, 5, v1            ; hi
    v_bfe_u32 v11, v1, 2, 2             ; r
    v_lshl_add_u32 v12, v10, 2, v11
    v_lshlrev_b32 v12, 7, v12           ; row*128
    v_lshrrev_b32 v13, 1, v11
    v_xor_b32 v14, s37, v13
    v_lshl_add_u32 v14, v14, 6, v12
    v_bfe_u32 v15, v1, 4, 1
    v_lshlrev_b32 v15, 5, v15
    v_and_b32 v16, 3, v1
    v_lshl_add_u32 v15, v16, 3, v15     ; nh*32+cq*8
    v_add_u32 v14, v14, v15
    v_add_u32 v14, 65536, v14
    v_xor_b32 v17, s36, v13
    v_lshl_add_u32 v17, v17, 6, v12
    v_add_u32 v17, v17, v15
    s_lshl_b32 s39, s37, 12
    s_add_u32 s39, s39, 131072
    v_add_u32 v17, s39, v17
    """)
    ACC=32
    for r in range(16): a(f"v_mov_b32 v{ACC+r}, 0")
    FR=48
    for c in range(4):
        if c==0: stamp(a,2)
        a(f"s_waitcnt vmcnt({8*(3-c)+3})\ns_barrier")
        stamp(a,3+c)
        for s in range(8):
            h=8*c+s
            a(f"ds_read_b128 {vr(FR+8*s,4)}, v9 offset:{h*1024}")
            a(f"ds_read_b64_tr_b16 {vr(FR+8*s+4,2)}, v14 offset:{h*2048}")
            a(f"ds_read_b64_tr_b16 {vr(FR+8*s+6,2)}, v14 offset:{h*2048+1024}")
            if s>=3:
                a(f"s_waitcnt lgkmcnt(9)")
                k=s-3
                a(f"v_mfma_f32_32x32x16_bf16 {vr(ACC,16)}, {vr(FR+8*k+4,4)}, {vr(FR+8*k,4)}, {vr(ACC,16)}")
        for k in range(5,8):
            a(f"s_waitcnt lgkmcnt({3*(7-k)})")
            a(f"v_mfma_f32_32x32x16_bf16 {vr(ACC,16)}, {vr(FR+8*k+4,4)}, {vr(FR+8*k,4)}, {vr(ACC,16)}")
    a("s_waitcnt vmcnt(0)\ns_barrier")
    stamp(a,7)
    for g in range(4): a(f"ds_read_b64_tr_b16 {vr(FR+2*g,2)}, v17 offset:{g*1024}")
    a(f"""
    v_sub_f32 v18, 1.0, v8
    v_cvt_pk_bf16_f32 v18, v18, v18
    s_mov_b32 s40, 0xffff0000
    v_and_b32 v18, s40, v18             ; 1-g (bf16)
    v_lshlrev_b32 v19, 10, v6
    v_lshl_add_u32 v19, v10, 3, v19
    s_lshl_b32 s41, s25, 16
    s_lshl_b32 s42, s36, 15
    s_add_u32 s41, s41, s42
    s_lshl_b32 s42, s37, 6
    s_add_u32 s41, s41, s42
    s_add_u32 s41, s41, s28
    s_waitcnt lgkmcnt(0)
    """)
    for g in range(4):
        for k in range(2):
            b=FR+2*g+k; r=ACC+4*g+2*k
            a(f"""
            v_lshlrev_b32 v20, 16, v{b}
            v_and_b32 v21, s40, v{b}
            v_mul_f32 v20, v18, v20
            v_mul_f32 v21, v18, v21
            v_fma_f32 v20, v8, v{r}, v20
            v_fma_f32 v21, v8, v{r+1}, v21
            v_cvt_pk_bf16_f32 v{FR+16+2*g+k}, v20, v21
            """)
        a(f"buffer_store_dwordx2 {vr(FR+16+2*g,2)}, v19, s[16:19], s41 offen offset:{16*g}")
    stamp_out(a,3,4)
    a("K3_END:\ns_endpgm")
    return a.l, dict(vgpr=112, sgpr=96, grid=256, block=256, lds=131072+8192)
```

```python
from asmlib import *
from k1 import *
import os
OPT=os.environ.get("OPT","")
NOCONV=os.environ.get("NOCONV","1")=="1"
vL=1; vKa=2; vVa=[3,4]; vBa=5; vAa=6; vLin=7
vQ=[8,12]; vS=[16,32]; vP=48; vO=[56,72]; vK=[88,92]; vV=[96,104]; vC=[112,128]; vA=144; vB=160; vNM=[112,128]; vT=176
NV=184
VST=1056
L_V=65536; L_U=L_V+64*VST; L_X=L_U+12288; XS=2176; L_FLAG=L_X+8*XS; LDS=L_FLAG+64
MF="v_mfma_f32_32x32x16_bf16"
PRIO={6:3,1:2,3:1,5:0}
class VM:
    def __init__(s): s.q=[]
    def add(s,t): s.q.append(t)
    def wait(s,t):
        i=max(k for k,x in enumerate(s.q) if x==t); return len(s.q)-1-i
def Areg(p,h): return vA+4*(2*p+h)
def Breg(p,t): return vB+4*(2*p+t)
def bread(a,p,t): a(f"ds_read_b128 {vr(Breg(p,t),4)}, v{vBa} offset:{(3072 if p==0 else 0)+512*t}")
def aload(a,p,h,nxt,vm=None,tag=None):
    a(f"buffer_load_dwordx4 {vr(Areg(p,h),4)}, v{vAa}, s[20:23], s35 offen offset:{(0 if h else 2048)+96-32*p-64*nxt}")
    if vm: vm.add(('A',p,h,nxt))
def cm(a,p,m,vm=None,reload=True):
    h=1 if m==2 else 0
    if m!=1:
        n=vm.wait(('A',p,h,0)) if vm else 3
        a(f"s_waitcnt vmcnt({n})")
    acc=vC[0] if m==0 else vC[1]
    if 'C' not in OPT: a(f"{MF} {vr(acc,16)}, {vr(Areg(p,h),4)}, {vr(Breg(p,1 if m==1 else 0),4)}, {vr(acc,16)}")
    if m>0 and reload: aload(a,p,h,1,vm)
def pv(a,o,v,p):
    if 'A' in OPT: a("s_nop 1"); return
    if 'D' in OPT: a(f"v_mfma_f32_16x16x32_bf16 {vr(o,4)}, {vr(v,4)}, {vr(p,4)}, {vr(o,4)}"); return
    a(f"{MF} {vr(o,16)}, {vr(v,4)}, {vr(p,4)}, {vr(o,16)}")
def sub(a, j, s, nm=False, ev=None):
    ev=ev or {}
    def run(k):
        for f in ev.get(k,[]): f()
    i=2*j+s
    sa=vS[s]; sb=vS[1-s]
    def ex(k):
        if 'E' in OPT: a(f"v_mov_b32 v{sa+k}, v{sa+k}\nv_mov_b32 v{sa+k}, v{sa+k}")
        else: a(f"v_exp_f32 v{sa+k}, v{sa+k}")
    def cv(k): a(f"v_cvt_pk_bf16_f32 v{vP+k}, v{sa+2*k}, v{sa+2*k+1}")
    if i in PRIO and not nm: a(f"s_setprio {PRIO[i]}")
    ex(0); ex(1)
    pvb = vV[(j+1)&1] if s==0 else vV[j&1]
    pv(a,vO[1-s],pvb+4,vP+4)
    ex(2); ex(3); cv(0); ex(4)
    c = vr(vNM[1-s],16) if nm else "0"
    if s==0:
        a(f"{MF} {vr(sb,16)}, {vr(vK[j&1],4)}, {vr(vQ[1],4)}, {c}")
        a(f"ds_read_b128 {vr(vK[(j+1)&1],4)}, v{vKa} offset:{(j+1)*1024}")
        ex(5); run('r1'); cv(1)
        a(f"ds_read_b128 {vr(vV[(j+1)&1],4)}, v{vVa[0]} offset:{(j+1)*VST}")
        ex(6)
        a(f"ds_read_b128 {vr(vV[(j+1)&1]+4,4)}, v{vVa[1]} offset:{(j+1)*VST+512}")
        ex(7); run('r2')
    else:
        a("s_waitcnt lgkmcnt(0)")
        a(f"{MF} {vr(sb,16)}, {vr(vK[(j+1)&1],4)}, {vr(vQ[0],4)}, {c}")
        ex(5); cv(1); ex(6); ex(7)
    run('a')
    cv(2); ex(8); cv(3); ex(9); ex(10)
    pv(a,vO[s],vV[j&1],vP)
    ex(11); cv(4); run('b')
    ex(12); ex(13); cv(5); run('c')
    ex(14); ex(15); cv(6); cv(7); run('d')
def dmadyn(a):
    a(f"""
    s_mov_b32 m0, s30
    s_add_u32 s30, s30, 4096
    buffer_load_dwordx4 v{vLin}, s[20:23], s31 offen lds
    s_mov_b32 m0, s38
    s_add_u32 s38, s38, {4*VST}
    buffer_load_dwordx4 v{vLin}, s[20:23], s32 offen lds
    s_add_u32 s31, s31, 4096
    s_add_u32 s32, s32, 4096
    """)
def adv(a, conv):
    a(f"v_add_u32 v{vKa}, 4096, v{vKa}\nv_add_u32 v{vVa[0]}, {4*VST}, v{vVa[0]}\nv_add_u32 v{vVa[1]}, {4*VST}, v{vVa[1]}")
    if conv: a(f"v_subrev_u32 v{vBa}, 16, v{vBa}\ns_sub_u32 s35, s35, 64")

def k2():
    a=A(); vm=VM()
    a("s_cmp_ge_u32 s2, 256\ns_cbranch_scc1 K2_END")
    stamp(a,0); stamp(a,1,True)
    a(f"""
    s_load_dwordx2 s[8:9], s[0:1], 120
    v_lshrrev_b32 v2, 6, v0
    v_and_b32 v1, 63, v0
    v_readfirstlane_b32 s24, v2
    s_and_b32 s25, s2, 7
    s_lshl_b32 s25, s25, 2
    s_bfe_u32 s26, s2, 0x20003
    s_add_u32 s25, s25, s26             ; head
    s_lshr_b32 s26, s2, 5               ; qtile (256)
    s_lshl_b32 s27, s25, 16             ; head*65536
    s_and_b32 s36, s24, 3               ; qp
    s_lshr_b32 s37, s24, 2              ; khalf
    s_lshl_b32 s28, s26, 3
    s_lshl_b32 s29, s36, 1
    s_add_u32 s28, s28, s29
    s_lshl_b32 s29, s28, 10
    s_add_u32 s29, s29, s27             ; Q offset
    v_lshlrev_b32 v{vLin}, 4, v1
    s_lshl_b32 s30, s37, 5
    s_add_u32 s30, s30, s36
    s_mul_i32 s38, s30, {VST}
    s_add_u32 s38, s38, {L_V}
    s_lshl_b32 s30, s30, 10
    s_add_u32 s31, s27, s30
    s_add_u32 s32, s31, {VF}
    s_add_u32 s31, s31, {KF}
    s_waitcnt lgkmcnt(0)
    """)
    srd(a,20,8,WS_SIZE)
    def dma(c):
        dmadyn(a); vm.add(('D',c)); vm.add(('D',c))
    dma(0)
    a(f"buffer_load_dwordx4 {vr(vQ[0],4)}, v{vLin}, s[20:23], s29 offen\nbuffer_load_dwordx4 {vr(vQ[1],4)}, v{vLin}, s[20:23], s29 offen offset:1024")
    vm.add('Q'); vm.add('Q')
    s_ch=37; s_k=36
    a(f"""
    s_lshl_b32 s48, s2, 1
    s_add_u32 s48, s48, s{s_ch}         ; d
    s_mul_i32 s35, s48, {KRC}
    s_add_u32 s35, s35, {KR-2048-96}
    s_lshl_b32 s49, s{s_k}, 9
    s_sub_u32 s35, s35, s49
    s_mul_i32 s50, s{s_ch}, 6144
    s_add_u32 s50, s50, {L_U}
    s_mul_i32 s51, s{s_k}, 1536
    s_add_u32 s51, s51, s50
    s_lshl_b32 s52, s48, 12
    s_lshl_b32 s53, s{s_k}, 4
    s_add_u32 s52, s52, s53
    s_add_u32 s52, s52, {XT}
    v_lshlrev_b32 v{vT}, 6, v1
    v_and_b32 v{vT+1}, 31, v1           ; row
    v_lshrrev_b32 v{vT+2}, 5, v1        ; hi
    v_lshlrev_b32 v{vAa}, 3, v{vT+2}
    v_sub_u32 v{vAa}, v{vAa}, v{vT+1}
    v_add_u32 v{vAa}, 2063, v{vAa}
    v_and_b32 v{vT+3}, 1, v{vAa}
    v_and_b32 v{vAa}, -2, v{vAa}
    v_lshlrev_b32 v{vAa}, 1, v{vAa}
    v_mul_u32_u24 v{vT+3}, {KRS}, v{vT+3}
    v_add_u32 v{vAa}, v{vAa}, v{vT+3}
    s_mov_b32 s42, 0
    v_mov_b32 v{vT+4}, 0
    v_mov_b32 v{vT+5}, 0
    v_lshlrev_b32 v{vT+3}, 3, v1
    v_add_u32 v{vT+3}, s51, v{vT+3}
    ds_write_b64 v{vT+3}, v[{vT+4}:{vT+5}]          ; 512B zeros
    v_lshrrev_b32 v{vT+3}, 3, v1
    s_lshl_b32 s53, s24, 3
    v_add_u32 v{vT+3}, s53, v{vT+3}
    v_mul_u32_u24 v{vT+3}, {VST}, v{vT+3}
    v_and_b32 v{vT+6}, 7, v1
    v_lshl_add_u32 v{vT+3}, v{vT+6}, 2, v{vT+3}
    v_add_u32 v{vB}, {L_V+1024}, v{vT+3}
    v_cmp_gt_u32 vcc, 4, v{vT+6}
    v_mov_b32 v{vT+7}, 0x3f803f80
    v_mov_b32 v{vT+3}, {L_FLAG}
    v_cndmask_b32 v{vB+1}, 0, v{vT+7}, vcc
    ds_write_b32 v{vB}, v{vB+1}
    ds_write_b32 v{vT+3}, v{vT+4}
    s_lshl_b32 s53, s37, 15
    v_add_u32 v{vKa}, s53, v{vLin}
    s_mul_i32 s53, s37, {32*VST}
    s_add_u32 s53, s53, {L_V}
    v_lshlrev_b32 v{vT+3}, 8, v{vT+2}
    v_and_b32 v{vT+6}, 15, v1
    v_lshl_add_u32 v{vT+3}, v{vT+6}, 4, v{vT+3}
    v_and_b32 v{vT+6}, 27, v1
    v_cmp_eq_u32 vcc, 16, v{vT+6}
    v_mov_b32 v{vT+6}, 1040
    v_mov_b32 v{vT+7}, 1024
    v_cndmask_b32 v{vT+6}, v{vT+6}, v{vT+7}, vcc
    v_cmp_gt_u32 vcc, 16, v{vT+1}
    v_subrev_u32 v{vT+7}, 512, v{vT+6}
    v_mul_u32_u24 v{vBa}, 1536, v{vT+2}
    v_cndmask_b32 v{vVa[0]}, v{vT+6}, v{vT+3}, vcc
    v_cndmask_b32 v{vVa[1]}, v{vT+7}, v{vT+3}, vcc
    v_add_u32 v{vVa[0]}, s53, v{vVa[0]}
    v_add_u32 v{vVa[1]}, s53, v{vVa[1]}
    v_lshl_add_u32 v{vBa}, v{vT+1}, 4, v{vBa}
    s_add_u32 s53, s50, 512
    s_lshl_b32 s54, s{s_k}, 7
    s_sub_u32 s53, s53, s54
    v_add_u32 v{vBa}, s53, v{vBa}
    """)
    def init_main():
        for r in range(32): a(f"v_mov_b32 v{vO[0]+r}, 0")
        for r in range(4,8): a(f"v_mov_b32 v{vP+r}, 0")
        for r in range(4,8): a(f"v_mov_b32 v{vV[1]+r}, 0")
    def first_reads(nm):
        a(f"ds_read_b128 {vr(vK[0],4)}, v{vKa}")
        a(f"ds_read_b128 {vr(vV[0],4)}, v{vVa[0]}\nds_read_b128 {vr(vV[0]+4,4)}, v{vVa[1]} offset:512")
        a(f"s_waitcnt lgkmcnt(2)\n{MF} {vr(vS[0],16)}, {vr(vK[0],4)}, {vr(vQ[0],4)}, {vr(vNM[0],16) if nm else 0}")
    init_main()
    for r in range(32): a(f"v_mov_b32 v{vC[0]+r}, 0")
    a("s_setprio 3")
    stamp(a,2)
    a(f"s_waitcnt vmcnt({vm.wait('Q')}) lgkmcnt(0)\ns_barrier")
    stamp(a,3); stamp(a,7,True)
    first_reads(False)
    dma(1)
    a("s_waitcnt lgkmcnt(0)")
    def uload():
        a(f"s_add_u32 m0, s51, 512\ns_nop 0\nbuffer_load_dwordx4 v{vT}, s[20:23], s52 offen lds"); vm.add('U')
    AL=lambda p,h: (lambda: aload(a,p,h,0,vm))
    CM=lambda p,m,v=None,rl=True: (lambda: cm(a,p,m,v,rl))
    BR=lambda p,t: (lambda: bread(a,p,t))
    ev0={0:{'b':[uload]},1:{'b':[AL(0,0),AL(0,1)]},2:{'b':[AL(1,0),AL(1,1)]},4:{'b':[lambda:dma(2)]},
         6:{'a':[lambda:a("s_waitcnt lgkmcnt(3)"),CM(0,0,vm)],'c':[CM(0,1,vm)],'d':[CM(0,2,vm)]},
         7:{'a':[CM(1,0,vm)],'c':[CM(1,1,vm)],'d':[CM(1,2,vm)]}}
    if NOCONV: ev0={4:{'b':[lambda:dma(2)]}}
    for j in range(4):
        if j==3:
            a(f"s_waitcnt vmcnt({vm.wait(('D',1) if NOCONV else 'U')})\ns_barrier")
            for p in range(2):
                for t in range(2):
                    if not NOCONV: bread(a,p,t)
        for s in range(2): sub(a,j,s,ev=ev0.get(2*j+s))
    adv(a,True)
    stamp(a,4)
    a("s_mov_b32 s43, 1\n.p2align 6\nK2_LC:")
    n0=len(a.l)
    def hook(k,thr):
        def f():
            a(f"s_cmp_gt_u32 s43, {thr}\ns_cbranch_scc1 K2_H{k}")
            dmadyn(a)
            a(f"K2_H{k}:")
        return f
    evl={0:{'r1':[BR(0,0)],'r2':[BR(0,1)],'b':[hook(0,3)]},1:{'c':[CM(0,0)]},2:{'c':[CM(0,1)]},3:{'c':[CM(0,2)]},
         4:{'r1':[BR(1,0)],'r2':[BR(1,1)],'b':[hook(4,2)]},5:{'c':[CM(1,0)]},6:{'c':[CM(1,1)]},7:{'c':[CM(1,2)]}}
    if NOCONV: evl={0:{'b':[hook(0,3)]},4:{'b':[hook(4,2)]}}
    for j in range(4):
        if j==3: a("s_lshr_b32 s53, 0x16, s43\ns_bitcmp1_b32 s53, 0\ns_cbranch_scc0 K2_NB\ns_cmp_eq_u32 s43, 4\ns_cbranch_scc0 K2_NB2\ns_waitcnt vmcnt(0)\nK2_NB2:\ns_waitcnt vmcnt(4)\ns_barrier\nK2_NB:")
        for s in range(2): sub(a,j,s,ev=evl.get(2*j+s))
    adv(a,True)
    a("s_add_u32 s43, s43, 1\ns_cmp_lt_u32 s43, 7\ns_cbranch_scc1 K2_LC")
    r=check_loop(a.l[n0:]); assert not r, r
    stamp(a,6)
    a(f"""
    s_bfe_u32 s53, s24, 0x10001
    s_lshl_b32 s54, s53, 15
    s_mul_i32 s55, s53, {32*VST}
    s_add_u32 s55, s55, {L_V}
    s_cmp_eq_u32 s37, 0
    s_cselect_b32 s54, s54, s55
    s_and_b32 s55, s24, 1
    s_lshl_b32 s55, s55, 13
    s_add_u32 s54, s54, s55
    v_add_u32 v{vT}, s54, v{vLin}
    """)
    vz=VM()
    PW=lambda g: (lambda: a(f"ds_write_b128 v{vT}, {vr(vC[0]+4*g,4)} offset:{g*1024}"))
    W0=lambda: a("s_waitcnt vmcnt(0)")
    def cmz(p,m):
        def f():
            h=1 if m==2 else 0
            acc=vC[0] if m==0 else vC[1]
            a(f"{MF} {vr(acc,16)}, {vr(Areg(p,h),4)}, {vr(Breg(p,1 if m==1 else 0),4)}, {vr(acc,16)}")
        return f
    ev7={0:{'r1':[BR(0,0),BR(1,0)],'r2':[BR(0,1),BR(1,1)]},1:{'a':[W0,cmz(0,0)],'c':[cmz(1,0)]},2:{'a':[cmz(0,1)],'c':[cmz(0,2)]},3:{'a':[cmz(1,1)],'c':[cmz(1,2)]},
         4:{'b':[PW(0)],'c':[PW(1)]},5:{'a':[PW(2)],'b':[PW(3)],'c':[PW(4)]},6:{'b':[PW(5)],'c':[PW(6)]},7:{'a':[PW(7)]}}
    if NOCONV: ev7={}
    for j in range(4):
        for s in range(2): sub(a,j,s,ev=ev7.get(2*j+s))
    adv(a,False)
    a("K2_DONE:")
    a(f"s_nop 1\n{MF} {vr(vO[1],16)}, {vr(vV[1]+4,4)}, {vr(vP+4,4)}, {vr(vO[1],16)}")
    stamp(a,5); stamp(a,9,True)
    a(f"""
    s_mul_i32 s53, s24, {XS}
    s_add_u32 s53, s53, {L_X}
    s_xor_b32 s54, s24, 4
    s_mul_i32 s54, s54, {XS}
    s_add_u32 s54, s54, {L_X}
    v_add_u32 v{vT}, s53, v{vLin}
    v_add_u32 v{vT+1}, s54, v{vLin}
    v_and_b32 v{vT+2}, 31, v1
    v_lshlrev_b32 v{vT+2}, 2, v{vT+2}
    v_add_u32 v{vT+3}, s54, v{vT+2}
    v_add_u32 v{vT+2}, s53, v{vT+2}
    s_cmp_eq_u32 s37, 0
    s_cbranch_scc1 K2_X0
    """)
    def xs(send,keep):
        a(f"ds_write_b128 v{vT}, {vr(send,4)}\nds_write_b128 v{vT}, {vr(send+4,4)} offset:1024\nds_write_b32 v{vT+2}, v{send+8} offset:2048")
        for r in range(9): a(f"v_mov_b32 v{vS[0]+r}, v{keep+r}")
    xs(vO[0],vO[1]); a("s_branch K2_X1\nK2_X0:\ns_nop 1"); xs(vO[1],vO[0])
    a(f"""
    K2_X1:
    s_mul_i32 s53, s37, {L_V}
    s_lshl_b32 s54, s36, 11
    s_add_u32 s53, s53, s54
    v_add_u32 v{vT+4}, s53, v{vLin}
    s_mul_i32 s54, s37, {32*VST-32768}
    s_add_u32 s54, s54, 32768
    v_add_u32 v{vT+5}, s54, v{vT+4}
    s_add_u32 s33, s28, s37
    s_lshl_b32 s33, s33, 15
    s_lshl_b32 s34, s25, 10
    s_add_u32 s33, s33, s34
    s_add_u32 s33, s33, {OF}
    s_lshl_b32 s53, s48, 12
    s_lshr_b32 s54, s36, 1
    s_lshl_b32 s54, s54, 11
    s_add_u32 s53, s53, s54
    s_and_b32 s54, s36, 1
    s_lshl_b32 s54, s54, 5
    s_add_u32 s53, s53, s54
    s_add_u32 s53, s53, {BT}
    s_mov_b32 s56, {f32(2.0**120)}
    s_mov_b32 s57, {f32(2.0**100)}
    s_mov_b32 s58, {f32(2.0**-100)}
    s_waitcnt lgkmcnt(0)
    s_barrier
    """)
    stamp(a,8)
    a(f"""
    ds_read_b128 {vr(vS[1],4)}, v{vT+1}
    ds_read_b128 {vr(vS[1]+4,4)}, v{vT+1} offset:1024
    ds_read_b32 v{vS[1]+8}, v{vT+3} offset:2048
    """)
    R=vA
    for q in range(4):
        for g in range(2): a(f"ds_read_b128 {vr(R+8*q+4*g,4)}, v{vT+4+(q>>1)} offset:{(q&1)*8192+g*1024}")
    a(f"""
    v_and_b32 v{vT+6}, 31, v1
    v_lshlrev_b32 v{vT+6}, 6, v{vT+6}
    v_lshrrev_b32 v{vT+7}, 5, v1
    v_lshl_add_u32 v{vT+6}, v{vT+7}, 4, v{vT+6}
    s_waitcnt lgkmcnt(8)
    """)
    o=vS[0]
    a(f"v_add_f32 v{o+8}, v{o+8}, v{vS[1]+8}\nv_rcp_f32 v{vT+4}, v{o+8}")
    for r in range(8): a(f"v_add_f32 v{o+r}, v{o+r}, v{vS[1]+r}")
    for r in range(8): a(f"v_mul_f32 v{vS[1]+r}, v{o+r}, v{vT+4}")
    for r in range(4): a(f"v_cvt_pk_bf16_f32 v{vP+r}, v{vS[1]+2*r}, v{vS[1]+2*r+1}")
    a(f"""
    buffer_store_dwordx4 {vr(vP,4)}, v{vLin}, s[20:23], s33 offen
    s_cmp_lg_u32 s42, 0
    s_cbranch_scc1 K2_FIN
    v_add_f32 v{vT}, abs(v{o}), abs(v{o+1})
    v_add_f32 v{vT+1}, abs(v{o+2}), abs(v{o+3})
    v_add_f32 v{vT+2}, abs(v{o+4}), abs(v{o+5})
    v_add_f32 v{vT+3}, abs(v{o+6}), abs(v{o+7})
    v_add_f32 v{vT}, v{vT}, v{vT+1}
    v_add_f32 v{vT+2}, v{vT+2}, v{vT+3}
    v_add_f32 v{vT}, v{vT}, v{vT+2}
    v_cmp_gt_f32 s[60:61], s56, v{vT}
    v_cmp_gt_f32 s[62:63], s57, v{o+8}
    v_cmp_lt_f32 s[64:65], s58, v{o+8}
    v_mov_b32 v{vT+1}, {L_FLAG}
    v_mov_b32 v{vT+2}, 1
    s_and_b64 s[60:61], s[60:61], s[62:63]
    s_and_b64 s[60:61], s[60:61], s[64:65]
    s_cmp_eq_u64 s[60:61], -1
    s_cbranch_scc1 K2_OK
    ds_write_b32 v{vT+1}, v{vT+2}
    K2_OK:
    s_waitcnt lgkmcnt(0)
    """)
    for r in range(8): a(f"v_add_f32 v{R+r}, v{R+r}, v{R+8+r}")
    for r in range(8): a(f"v_add_f32 v{R+16+r}, v{R+16+r}, v{R+24+r}")
    for r in range(8): a(f"v_add_f32 v{R+r}, v{R+r}, v{R+16+r}")
    for k in range(4): a(f"v_cvt_pk_bf16_f32 v{R+k}, v{R+2*k}, v{R+2*k+1}")
    a(f"""
    v_permlane32_swap_b32 v{R}, v{R+2}
    v_permlane32_swap_b32 v{R+1}, v{R+3}
    {'s_nop 0' if NOCONV else f'buffer_store_dwordx4 {vr(R,4)}, v{vT+6}, s[20:23], s53 offen'}
    """)
    a(f"""
    s_barrier
    ds_read_b32 v{vT+2}, v{vT+1}
    s_waitcnt lgkmcnt(0)
    v_readfirstlane_b32 s53, v{vT+2}
    s_cmp_eq_u32 s53, 0
    {'s_branch' if OPT else 's_cbranch_scc1'} K2_FIN
    s_mov_b32 s42, 1
    s_sub_u32 s30, s30, {8*4096}
    s_sub_u32 s31, s31, {8*4096}
    s_sub_u32 s32, s32, {8*4096}
    s_sub_u32 s38, s38, {32*VST}
    """)
    for c in range(8): dmadyn(a)
    a(f"""
    v_lshrrev_b32 v{vT+3}, 3, v1
    s_lshl_b32 s53, s24, 3
    v_add_u32 v{vT+3}, s53, v{vT+3}
    v_mul_u32_u24 v{vT+3}, {VST}, v{vT+3}
    v_and_b32 v{vT+6}, 7, v1
    v_lshl_add_u32 v{vT+3}, v{vT+6}, 2, v{vT+3}
    v_add_u32 v{vT+3}, {L_V+1024}, v{vT+3}
    v_cmp_gt_u32 vcc, 4, v{vT+6}
    v_mov_b32 v{vT+7}, 0x3f803f80
    v_cndmask_b32 v{vT+7}, 0, v{vT+7}, vcc
    ds_write_b32 v{vT+3}, v{vT+7}
    s_waitcnt vmcnt(0) lgkmcnt(0)
    s_barrier
    v_mov_b32 v{vT}, 0xff800000
    v_mov_b32 v{vT+1}, 0xff800000
    v_mov_b32 v{vT+2}, v{vLin}
    s_mov_b32 s43, 64
    K2_MAXLOOP:
    ds_read_b128 {vr(vK[0],4)}, v{vT+2}
    v_add_u32 v{vT+2}, 1024, v{vT+2}
    s_waitcnt lgkmcnt(0)
    {MF} {vr(vS[0],16)}, {vr(vK[0],4)}, {vr(vQ[0],4)}, 0
    {MF} {vr(vS[1],16)}, {vr(vK[0],4)}, {vr(vQ[1],4)}, 0
    """)
    for s in range(2):
        for k in range(8): a(f"v_max3_f32 v{vT+s}, v{vT+s}, v{vS[s]+2*k}, v{vS[s]+2*k+1}")
    a(f"""
    s_sub_u32 s43, s43, 1
    s_cmp_lg_u32 s43, 0
    s_cbranch_scc1 K2_MAXLOOP
    v_mov_b32 v{vT+2}, v{vT}
    v_mov_b32 v{vT+3}, v{vT+1}
    v_permlane32_swap_b32 v{vT}, v{vT+2}
    v_permlane32_swap_b32 v{vT+1}, v{vT+3}
    v_max_f32 v{vT}, v{vT}, v{vT+2}
    v_max_f32 v{vT+1}, v{vT+1}, v{vT+3}
    v_subrev_u32 v{vKa}, {8*4096}, v{vKa}
    v_subrev_u32 v{vVa[0]}, {32*VST}, v{vVa[0]}
    v_subrev_u32 v{vVa[1]}, {32*VST}, v{vVa[1]}
    """)
    for s in range(2):
        for r in range(16): a(f"v_sub_f32 v{vNM[s]+r}, 0, v{vT+s}")
    init_main()
    first_reads(True)
    a("s_mov_b32 s43, 8\ns_waitcnt lgkmcnt(0)\ns_nop 7\ns_nop 3\nK2_LF:")
    n0=len(a.l)
    for j in range(4):
        for s in range(2): sub(a,j,s,nm=True)
    adv(a,False)
    a("s_sub_u32 s43, s43, 1\ns_cmp_lg_u32 s43, 0\ns_cbranch_scc1 K2_LF")
    r=check_loop(a.l[n0:]); assert not r, r
    a("s_branch K2_DONE\nK2_FIN:")
    stamp_out(a,2,8)
    a("K2_END:\ns_endpgm")
    return a.l, dict(vgpr=NV, sgpr=96, grid=256, block=512, lds=LDS)
```

```python
from asmlib import *
from k1 import f32, LOG2E, srd, QF,KF,VF,OF,XT,BT,G,WS_SIZE
import math, struct, os
OPT=os.environ.get("OPTA","")
MF="v_mfma_f32_32x32x16_bf16"
FL=0x1110000; FLX=FL; FLQ=FL+0x2000; FLB=FL+0x4000; FLO=FL+0x6000
RINGW=61440; WST=12288; NW=5; RINGX=RINGW+NW*WST; XST=8192; NX=3; L_XS=147456; L_UA=147456
VST=1056; L_V=65536
KCP=[L_V+16*VST, L_V+48*VST]; CST=4192
TBL=[16384,49152]; KD=[26112,58880-2048]
KD=[26112, 44800]
SC=" sc1"
class VM:
    def __init__(s): s.q=[]
    def add(s,t,n=1): s.q+= [t]*n
    def wait(s,t):
        i=max(k for k,x in enumerate(s.q) if x==t); return len(s.q)-1-i
lab=[0]
def get_epoch(a, vt):
    lab[0]+=1; L=f"EP{lab[0]}"
    a(f"""
    v_mov_b32 v{vt}, 0
    s_mov_b32 s67, 200000
    {L}:
    buffer_load_dword v{vt+1}, v{vt}, s[60:63], 0 offen sc0 sc1
    s_sub_u32 s67, s67, 1
    s_waitcnt vmcnt(0)
    v_readfirstlane_b32 s66, v{vt+1}
    s_cmp_eq_u32 s67, 0
    s_cbranch_scc1 {L}_X
    s_cmp_eq_u32 s66, 0
    s_cbranch_scc1 {L}
    {L}_X:
    """)
def poll_flags(a, vt, soff, n):
    lab[0]+=1; L=f"PL{lab[0]}"
    a(f"""
    v_and_b32 v{vt}, {n-1}, v1
    v_lshlrev_b32 v{vt}, 2, v{vt}
    s_mov_b32 s67, 200000
    {L}:
    buffer_load_dword v{vt+1}, v{vt}, s[20:23], s{soff} offen sc0 sc1
    s_sub_u32 s67, s67, 1
    s_waitcnt vmcnt(0)
    v_cmp_ne_u32 vcc, s66, v{vt+1}
    s_cmp_eq_u32 s67, 0
    s_cbranch_scc1 {L}_X
    s_cbranch_vccnz {L}
    {L}_X:
    """)
def set_flag(a, vt, soff):
    a(f"""
    v_mov_b32 v{vt}, 0
    v_mov_b32 v{vt+1}, s66
    s_mov_b64 exec, 1
    buffer_store_dword v{vt+1}, v{vt}, s[20:23], s{soff} offen sc0 sc1
    s_mov_b64 exec, -1
    """)

def xt_part(a):
    a(f"""
    s_mov_b32 s27, s25                  ; tb
    s_lshl_b32 s28, s26, 1
    s_add_u32 s28, s28, s24             ; db32
    s_lshl_b32 s29, s27, 16
    s_lshl_b32 s32, s28, 6
    s_add_u32 s29, s29, s32
    s_add_u32 s32, s29, 16384
    s_add_u32 s33, s29, 32768
    s_add_u32 s34, s29, 49152
    v_lshrrev_b32 v2, 2, v1
    v_lshlrev_b32 v2, 10, v2
    v_and_b32 v3, 3, v1
    v_lshl_add_u32 v2, v3, 4, v2
    buffer_load_dwordx4 v[16:19], v2, s[12:15], s29 offen
    buffer_load_dwordx4 v[20:23], v2, s[12:15], s32 offen
    buffer_load_dwordx4 v[24:27], v2, s[12:15], s33 offen
    buffer_load_dwordx4 v[28:31], v2, s[12:15], s34 offen
    s_lshl_b32 s35, s24, 12
    s_add_u32 s35, s35, {L_XS}
    v_lshlrev_b32 v6, 4, v1
    v_add_u32 v8, s35, v6
    v_lshrrev_b32 v9, 4, v1
    v_lshlrev_b32 v10, 9, v9
    v_bfe_u32 v11, v1, 2, 2
    v_lshl_add_u32 v10, v11, 6, v10
    v_and_b32 v11, 3, v1
    v_lshl_add_u32 v10, v11, 3, v10
    v_add_u32 v10, s35, v10
    v_and_b32 v11, 15, v1
    v_lshlrev_b32 v11, 12, v11
    v_lshl_add_u32 v11, v9, 4, v11
    s_lshl_b32 s32, s28, 17
    s_lshl_b32 s33, s27, 7
    s_add_u32 s32, s32, s33
    s_add_u32 s32, s32, {XT}
    s_add_u32 s33, s32, 65536
    s_lshl_b32 s68, s28, 8
    s_lshl_b32 s34, s27, 2
    s_add_u32 s68, s68, s34
    s_add_u32 s68, s68, {FLX}
    """)
    a("""
    s_barrier
    s_waitcnt vmcnt(0)
    ds_write_b128 v8, v[16:19]
    ds_write_b128 v8, v[20:23] offset:1024
    ds_write_b128 v8, v[24:27] offset:2048
    ds_write_b128 v8, v[28:31] offset:3072
    s_waitcnt lgkmcnt(0)
    """)
    k=0
    for dh in range(2):
        for th in range(2):
            for q in range(2): a(f"ds_read_b64_tr_b16 {vr(52+k*4+2*q,2)}, v10 offset:{th*2048+q*256+dh*32}")
            k+=1
    a("s_waitcnt lgkmcnt(0)")
    k=0
    for dh in range(2):
        for th in range(2):
            a(f"buffer_store_dwordx4 {vr(52+k*4,4)}, v11, s[20:23], s{32+dh} offen offset:{th*64}{SC}"); k+=1
def gate_part(a):
    a(f"""
    s_lshl_b32 s27, s25, 3
    s_add_u32 s27, s27, s26
    s_lshl_b32 s27, s27, 1
    s_add_u32 s27, s27, s24
    s_sub_u32 s27, s27, 2
    s_lshl_b32 s28, s27, 12
    v_lshlrev_b32 v6, 4, v1
    global_load_dwordx4 v[32:35], v6, s[56:57]
    buffer_load_dwordx4 v[36:39], v6, s[12:15], s28 offen
    buffer_load_dwordx4 v[40:43], v6, s[12:15], s28 offen offset:1024
    buffer_load_dwordx4 v[44:47], v6, s[12:15], s28 offen offset:2048
    buffer_load_dwordx4 v[48:51], v6, s[12:15], s28 offen offset:3072
    s_mov_b32 s34, 0xffff0000
    s_mov_b32 s35, {f32(-LOG2E)}
    s_lshr_b32 s68, s2, 4
    s_lshl_b32 s68, s68, 8
    s_add_u32 s68, s68, {FLX}
    s_barrier
    s_waitcnt vmcnt(0)
    """)
    for i in range(4): a(f"v_lshlrev_b32 v{68+2*i}, 16, v{32+i}\nv_and_b32 v{69+2*i}, s34, v{32+i}")
    for rho in range(4):
        src=36+4*rho; acc=100+rho
        for i in range(4): a(f"v_lshlrev_b32 v{80+2*i}, 16, v{src+i}\nv_and_b32 v{81+2*i}, s34, v{src+i}")
        for i in range(8): a(f"v_mul_f32 v{80+i}, v{80+i}, v{68+i}")
        for i in range(4): a(f"v_cvt_pk_bf16_f32 v{88+i}, v{80+2*i}, v{81+2*i}")
        for i in range(4): a(f"v_lshlrev_b32 v{80+2*i}, 16, v{88+i}\nv_and_b32 v{81+2*i}, s34, v{88+i}")
        for i in range(4): a(f"v_add_f32 v{80+i}, v{80+i}, v{84+i}")
        a(f"v_add_f32 v80, v80, v82\nv_add_f32 v81, v81, v83\nv_add_f32 v{acc}, v80, v81")
    for mod in ("row_shr:1","row_shr:2","row_shr:4","row_shr:8"):
        for rho in range(4): a(f"v_add_f32_dpp v{100+rho}, v{100+rho}, v{100+rho} {mod} row_mask:0xf bank_mask:0xf bound_ctrl:0")
    for mod,rm in (("row_bcast:15","0xa"),("row_bcast:31","0xc")):
        for rho in range(4): a(f"v_add_f32_dpp v{100+rho}, v{100+rho}, v{100+rho} {mod} row_mask:{rm} bank_mask:0xf")
    for op in ("v_cvt_pk_bf16_f32 v{r}, v{r}, v{r}","v_and_b32 v{r}, s34, v{r}","v_mul_f32 v{r}, s35, v{r}","v_exp_f32 v{r}, v{r}","v_add_f32 v{r}, 1.0, v{r}",
               "v_rcp_f32 v{r}, v{r}","v_cvt_pk_bf16_f32 v{r}, v{r}, v{r}","v_and_b32 v{r}, s34, v{r}"):
        for rho in range(4): a(op.format(r=100+rho))
    a(f"""
    s_lshl_b32 s36, s27, 4
    s_add_u32 s36, s36, {G}
    v_mov_b32 v2, 0
    s_mov_b32 exec_lo, 0
    s_mov_b32 exec_hi, 0x80000000
    buffer_store_dwordx4 v[100:103], v2, s[20:23], s36 offen{SC}
    s_mov_b64 exec, -1
    """)

def compute(a):
    a("s_cmp_ge_u32 s24, 2\ns_cbranch_scc1 KA_GATE")
    xt_part(a)
    a("s_branch KA_CMAIN\nKA_GATE:")
    gate_part(a)
    a("KA_CMAIN:")
    vXr=[4,5,6,7]; vWr=8; vT=10; vT2=11; vT3=12
    a(f"""
    s_and_b32 s39, s24, 1               ; r2
    s_lshr_b32 s64, s24, 1              ; hh
    s_lshl_b32 s29, s39, 12
    s_add_u32 s29, s29, {RINGX}
    v_and_b32 v{vT}, 31, v1
    v_lshrrev_b32 v{vT2}, 5, v1
    v_lshrrev_b32 v{vT3}, 1, v{vT}
    v_xor_b32 v{vT3}, v{vT3}, v{vT2}
    v_and_b32 v{vT3}, 7, v{vT3}
    v_lshlrev_b32 v{vXr[0]}, 7, v{vT}
    v_lshl_add_u32 v{vXr[0]}, v{vT3}, 4, v{vXr[0]}
    v_add_u32 v{vXr[0]}, s29, v{vXr[0]}
    v_xor_b32 v{vXr[1]}, 32, v{vXr[0]}
    v_xor_b32 v{vXr[2]}, 64, v{vXr[0]}
    v_xor_b32 v{vXr[3]}, 0x60, v{vXr[0]}
    v_mul_u32_u24 v{vWr}, 3072, v{vT2}
    v_bfe_u32 v{vT}, v1, 2, 2
    v_mul_u32_u24 v{vT3}, 384, v{vT}
    v_add_u32 v{vWr}, v{vWr}, v{vT3}
    v_lshrrev_b32 v{vT}, 1, v{vT}
    v_xor_b32 v{vT}, s64, v{vT}
    v_lshl_add_u32 v{vWr}, v{vT}, 6, v{vWr}
    v_bfe_u32 v{vT}, v1, 4, 1
    v_lshl_add_u32 v{vWr}, v{vT}, 5, v{vWr}
    v_and_b32 v{vT}, 3, v1
    v_lshl_add_u32 v{vWr}, v{vT}, 3, v{vWr}
    v_add_u32 v{vWr}, {RINGW}, v{vWr}
    """)
    ACC=[112,128,144]
    for r in range(112,160): a(f"v_mov_b32 v{r}, 0")
    SET=[160,192]
    def reads(c):
        st=SET[c&1]
        for s in range(2):
            a(f"ds_read_b128 {vr(st+4*s,4)}, v{vXr[2*(c&1)+s]} offset:{((c>>1)%NX)*XST}")
            for seg in range(3):
                for q in range(2): a(f"ds_read_b64_tr_b16 {vr(st+8+(s*3+seg)*4+2*q,2)}, v{vWr} offset:{(c%NW)*WST+s*6144+q*1536+seg*128}")
    def mfmas(c):
        st=SET[c&1]
        for s in range(2):
            x=vr(st+4*s,4)
            for seg in range(3):
                w=vr(st+8+(s*3+seg)*4,4); d=vr(ACC[seg],16)
                a(f"{MF} {d}, {w}, {x}, {d}" if seg<2 else f"{MF} {d}, {x}, {w}, {d}")
    stamp(a,2)
    for c in range(16):
        a("s_barrier")
        if c in (0,4,8,12): stamp(a,3+c//4)
        reads(c)
        if c>0: mfmas(c-1)
        if c==1: a("v_mov_b32 v13, 0\nbuffer_load_dword v14, v13, s[60:63], 0 offen sc0 sc1")
        if c==4:
            a("s_waitcnt vmcnt(0)\nv_readfirstlane_b32 s66, v14\ns_cmp_lg_u32 s66, 0\ns_cbranch_scc1 KA_EPOK")
            get_epoch(a,13)
            a("KA_EPOK:\ns_cmp_ge_u32 s24, 2\ns_cbranch_scc1 KA_NOF")
            set_flag(a,13,68)
            a("KA_NOF:")
        if c==10:
            a("""
            s_cmp_lt_u32 s24, 2
            s_cbranch_scc1 KA_NOU1
            v_and_b32 v13, 31, v1
            v_lshlrev_b32 v13, 2, v13
            buffer_load_dword v14, v13, s[20:23], s68 offen sc0 sc1
            KA_NOU1:
            """)
        if c==13:
            a("""
            s_cmp_lt_u32 s24, 2
            s_cbranch_scc1 KA_NOU2
            s_waitcnt vmcnt(0)
            v_cmp_ne_u32 vcc, s66, v14
            s_nop 1
            s_cbranch_vccz KA_UOK
            """)
            poll_flags(a,13,68,32)
            a(f"""
            KA_UOK:
            s_sub_u32 s36, s24, 2
            s_lshl_b32 s34, s2, 1
            s_add_u32 s34, s34, s36
            s_lshl_b32 s34, s34, 12
            s_add_u32 s34, s34, {XT}
            s_mul_i32 s36, s36, 6144
            s_add_u32 s36, s36, {L_UA}
            v_lshlrev_b32 v13, 6, v1
            v_mov_b32 v14, 0
            v_mov_b32 v15, 0
            v_lshlrev_b32 v3, 3, v1
            v_add_u32 v3, s36, v3
            """)
            for p in range(4):
                a(f"s_add_u32 s35, s34, {16*p}\ns_add_u32 m0, s36, {p*1536+512}\ns_nop 0\nbuffer_load_dwordx4 v13, s[20:23], s35 offen{SC} lds")
            for p in range(4): a(f"ds_write_b64 v3, v[14:15] offset:{p*1536}")
            a("KA_NOU2:")
        a("s_waitcnt lgkmcnt(0)")
    a("s_waitcnt vmcnt(0)\ns_barrier")
    mfmas(15)
    stamp(a,7)
    a(f"""
    s_lshl_b32 s33, s25, 1
    s_add_u32 s33, s33, s39
    s_lshl_b32 s33, s33, 10
    s_lshl_b32 s34, s26, 1
    s_add_u32 s34, s34, s64
    s_lshl_b32 s34, s34, 17
    s_add_u32 s33, s33, s34
    s_add_u32 s34, s33, 0x10000
    s_add_u32 s35, s33, {KF}
    s_add_u32 s36, s33, {KF+0x10000}
    s_add_u32 s37, s33, {VF}
    s_mov_b32 s38, {f32(0.25*LOG2E)}
    v_lshlrev_b32 v{vT}, 4, v1
    v_bfe_u32 v{vT2}, v1, 4, 1
    v_lshlrev_b32 v{vT2}, 16, v{vT2}
    v_lshrrev_b32 v{vT3}, 5, v1
    v_lshl_add_u32 v{vT2}, v{vT3}, 8, v{vT2}
    v_and_b32 v{vT3}, 15, v1
    v_lshl_add_u32 v{vT2}, v{vT3}, 4, v{vT2}
    """)
    for r in range(16): a(f"v_mul_f32 v{ACC[0]+r}, s38, v{ACC[0]+r}")
    for seg in (1,2,0):
        for i in range(8): a(f"v_cvt_pk_bf16_f32 v{64+seg*8+i}, v{ACC[seg]+2*i}, v{ACC[seg]+2*i+1}")
        if seg==1: a(f"buffer_store_dwordx4 v[72:75], v{vT}, s[20:23], s35 offen{SC}\nbuffer_store_dwordx4 v[76:79], v{vT}, s[20:23], s36 offen{SC}")
        if seg==2: a(f"buffer_store_dwordx4 v[80:83], v{vT2}, s[20:23], s37 offen{SC}\nbuffer_store_dwordx4 v[84:87], v{vT2}, s[20:23], s37 offen offset:512{SC}")
        if seg==0: a(f"buffer_store_dwordx4 v[64:67], v{vT}, s[20:23], s33 offen{SC}\nbuffer_store_dwordx4 v[68:71], v{vT}, s[20:23], s34 offen{SC}")

def loader(a, isW):
    vm=VM()
    for i in range(3):
        a(f"""
        v_add_u32 v8, {64*i}, v1
        v_mul_u32_u24 v9, 171, v8
        v_lshrrev_b32 v9, 12, v9            ; row = p/24
        v_mul_u32_u24 v10, 24, v9
        v_sub_u32 v10, v8, v10              ; p%24
        v_mul_u32_u24 v{2+i}, 3072, v9
        v_lshrrev_b32 v11, 3, v10
        v_lshl_add_u32 v{2+i}, v11, 10, v{2+i}
        v_lshlrev_b32 v11, 1, v9
        v_and_b32 v11, 4, v11
        v_xor_b32 v11, v11, v10
        v_and_b32 v11, 7, v11
        v_lshl_add_u32 v{2+i}, v11, 4, v{2+i}
        """)
    a("s_lshl_b32 s27, s26, 7")
    if not isW:
        a(f"""
        v_lshrrev_b32 v5, 3, v1
        v_lshlrev_b32 v5, 10, v5
        v_lshrrev_b32 v8, 4, v1
        v_xor_b32 v8, v8, v1
        v_and_b32 v8, 7, v8
        v_lshl_add_u32 v5, v8, 4, v5
        v_xor_b32 v6, 64, v5
        s_lshl_b32 s28, s25, 16
        v_and_b32 v12, 15, v1
        v_lshlrev_b32 v12, 10, v12
        v_lshrrev_b32 v9, 4, v1
        v_lshl_add_u32 v12, v9, 7, v12
        s_lshr_b32 s33, s30, 1
        s_lshl_b32 s33, s33, 19
        s_lshl_b32 s34, s31, 14
        s_add_u32 s37, s33, s34
        """)
    else:
        a(f"""
        v_mul_u32_u24 v9, 171, v1
        v_lshrrev_b32 v9, 11, v9
        v_mul_u32_u24 v10, 12, v9
        v_sub_u32 v10, v1, v10
        v_lshrrev_b32 v12, 1, v9
        v_lshlrev_b32 v12, 6, v12
        v_and_b32 v13, 1, v9
        v_add_u32 v12, v12, v13
        v_mul_u32_u24 v12, 3072, v12
        v_lshrrev_b32 v13, 2, v10
        v_lshl_add_u32 v12, v13, 10, v12
        v_and_b32 v13, 3, v10
        v_lshl_add_u32 v12, v13, 7, v12
        v_mov_b32 v13, 0x40000000
        v_cmp_lt_u32 vcc, 47, v1
        v_cndmask_b32 v12, v12, v13, vcc
        s_and_b32 s33, s30, 1
        s_lshl_b32 s33, s33, 9
        s_mul_i32 s34, s31, 6144
        s_add_u32 s37, s33, s34
        """)
    def touch(k):
        if 'T' not in OPT: return
        if isW: a(f"s_add_u32 s38, s37, {k*128*3072}\nbuffer_load_dword v14, v12, s[16:19], s38 offen"); vm.add('T')
        elif k%2==0: a(f"buffer_load_dword v14, v12, s[12:15], s37 offen offset:{256*k}"); vm.add('T')
    WI=list(range(4,12)) if isW else list(range(4))
    def issueW(c):
        for i in WI:
            a(f"s_add_u32 s33, s27, {(32*c+8*(i//3))*3072}\ns_mov_b32 m0, {RINGW+(c%NW)*WST+i*1024}\ns_nop 0\nbuffer_load_dwordx4 v{2+i%3}, s[16:19], s33 offen lds")
        vm.add(('W',c),len(WI))
    def issueX(q,half):
        if isW: return
        for i in range(4*half,4*half+4):
            a(f"s_add_u32 s33, s28, {128*q+8192*i}\ns_mov_b32 m0, {RINGX+(q%NX)*XST+i*1024}\ns_nop 0\nbuffer_load_dwordx4 v{5+(i&1)}, s[12:15], s33 offen lds")
        vm.add(('X',q),4)
    TP=[int(x) for x in os.environ.get("TP","0,0,0,0").split(",")]
    stamp(a,9)
    if 'R' not in OPT: a("s_barrier")
    def T(pos):
        for k in range(4):
            if TP[k]==pos: touch(k)
    T(0)
    if 'R' in OPT: a('s_barrier')
    issueX(0,0); issueX(0,1); issueW(0); T(1); issueW(1); T(2); issueX(1,0); issueX(1,1); issueW(2); T(3); issueW(3); T(4)
    stamp(a,2)
    for c in range(16):
        n=vm.wait(('W',c))
        if not isW: n=min(n,vm.wait(('X',c>>1)))
        a(f"s_waitcnt vmcnt({n})\ns_barrier")
        if (c>>1)+2<8: issueX((c>>1)+2,c&1)
        if c+4<16: issueW(c+4)
        T(5+c)
    stamp(a,3)
    a("s_barrier")

def kgen(a0):
    a=A()
    a(f"""
    s_sub_u32 s29, s24, 6               ; ch
    s_lshl_b32 s26, s2, 1
    s_add_u32 s26, s26, s29             ; d
    s_lshl_b32 s27, s26, 8
    v_lshlrev_b32 v2, 2, v1
    v_add_u32 v2, s27, v2
    s_lshl_b32 s27, s26, 1
    v_mov_b32 v3, s27
    global_load_ushort v10, v3, s[52:53]
    global_load_dword v4, v2, s[40:41]
    global_load_dword v5, v2, s[42:43]
    global_load_dword v6, v2, s[44:45]
    global_load_dword v7, v2, s[46:47]
    global_load_dword v8, v2, s[48:49]
    global_load_dword v9, v2, s[50:51]
    global_load_ushort v11, v3, s[54:55]
    """)
    a("s_barrier")
    a("s_waitcnt vmcnt(7)")
    stamp(a,9)
    a(f"""
    s_cmp_lg_u32 s26, 0
    s_cbranch_scc1 KA_NOEP
    s_memrealtime s[68:69]
    v_mov_b32 v16, 0
    s_waitcnt lgkmcnt(0)
    s_or_b32 s68, s68, 1
    v_mov_b32 v17, s68
    s_mov_b64 exec, 1
    buffer_store_dword v17, v16, s[60:63], 0 offen sc0 sc1
    s_mov_b64 exec, -1
    s_waitcnt vmcnt(0)
    KA_NOEP:
    s_mul_i32 s28, s29, 30720
    v_lshlrev_b32 v2, 3, v1
    v_add_u32 v2, s28, v2
    v_and_b32 v12, 31, v1
    v_lshrrev_b32 v13, 5, v1
    v_mul_u32_u24 v3, 528, v12
    v_lshl_add_u32 v3, v13, 4, v3
    v_add_u32 v3, s28, v3
    s_mov_b32 s30, {f32(LOG2E)}
    s_mov_b32 s31, {f32(LOG2E-struct.unpack('<f',struct.pack('<f',LOG2E))[0])}
    s_mov_b32 s32, {f32(math.log(2))}
    s_mov_b32 s33, {f32(1/(2*math.pi))}
    s_mov_b32 s34, 0xffff0000
    s_waitcnt vmcnt(0)
    """)
    stamp(a,2)
    nstart=len(a.l)
    a(f"""
    v_lshlrev_b32 v10, 16, v10
    v_mul_f32 v14, s30, v10
    v_exp_f32 v15, v14
    v_fma_f32 v16, v10, s30, -v14
    v_fma_f32 v16, v10, s31, v16
    v_mul_f32 v16, s32, v16
    v_fma_f32 v15, v15, v16, v15
    v_cvt_pk_bf16_f32 v15, v15, v15
    v_and_b32 v15, s34, v15
    """)
    S=[20,70]
    for x,b in enumerate(S):
        for k in range(6): a(f"v_lshlrev_b32 v{b+30+k}, 16, v{4+k}" if x==0 else f"v_and_b32 v{b+30+k}, s34, v{4+k}")
    for t in ("v_mul_f32 v{b30}, v15, v{b30}","v_mul_f32 v{b31}, v15, v{b31}","v_mul_f32 v{b32}, v15, v{b32}","v_mul_f32 v{b33}, v15, v{b33}",
              "v_mul_f32 v{b0}, s30, v{b30}","v_mul_f32 v{b1}, s33, v{b31}","v_mul_f32 v{b2}, v{b34}, v{b32}","v_mul_f32 v{b3}, v{b34}, v{b33}",
              "v_fma_f32 v{b2}, -v{b35}, v{b33}, v{b2}","v_fma_f32 v{b3}, v{b35}, v{b32}, v{b3}"):
        for b in S: a(t.format(**{f"b{k}":b+k for k in range(50)}))
    for (E,k) in ((6,8.0),(10,32.0),(4,1.0),(8,256.0)):
        for t in (f"v_mul_f32 v{{b30}}, {f32(k)}, v{{b0}}",f"v_mul_f32 v{{b31}}, {f32(k)}, v{{b1}}","v_fract_f32 v{b31}, v{b31}","v_exp_f32 v{b30}, v{b30}","v_cos_f32 v{b32}, v{b31}","v_sin_f32 v{b33}, v{b31}",
                  f"v_mul_f32 v{{b{E}}}, v{{b30}}, v{{b32}}",f"v_mul_f32 v{{b{E+1}}}, v{{b30}}, v{{b33}}"):
            for b in S: a(t.format(**{f"b{k2}":b+k2 for k2 in range(50)}))
    YOFF=25*528
    PK=[120,122,124,126,128,130]; pkc=[0]
    def wr(row,regoff,neg):
        p=PK[pkc[0]%6]; pkc[0]+=1
        for x,b in enumerate(S): a(f"v_cvt_pk_bf16_f32 v{p+x}, v{b+regoff}, {'-' if neg else ''}v{b+regoff+1}")
        a(f"ds_write_b64 v2, {vr(p,2)} offset:{row*528}")
    def cgroup(ops):
        for (D,A_,B_,T) in ops:
            for b in S: a(f"v_pk_mul_f32 {vr(b+T,2)}, {vr(b+A_,2)}, {vr(b+B_,2)} op_sel:[0,0] op_sel_hi:[0,1]")
        for (D,A_,B_,T) in ops:
            for b in S: a(f"v_pk_fma_f32 {vr(b+D,2)}, {vr(b+A_,2)}, {vr(b+B_,2)}, {vr(b+T,2)} op_sel:[1,1,0] op_sel_hi:[1,0,1] neg_lo:[1,0,0]")
    a("v_mov_b32 v132, 0x00003f80\nv_mov_b32 v133, 0x00003f80")
    a(f"ds_write_b64 v2, v[132:133] offset:{YOFF}")
    holder={0:2,1:36,2:22,3:36,4:24,5:36,6:26,7:36}
    xs=[]
    for r in range(1,8): xs.append((holder[r],holder[r-1],4,r))
    for r,row in ((2,9),(6,13),(0,8),(4,12)): xs.append((holder[r],holder[r],8,row))
    for row0,row4 in ((10,14),(11,15)): xs.append((2,2,8,row0)); xs.append((24,24,8,row4))
    for row in (16,17,18,19,24): xs.append((2,2,8,row))
    ys=[(18,6,6,2),(20,18,6,3)]
    H={1:38,2:18,3:20,0:40}
    for j in range(5,32):
        c=j%4
        src = H[c] if j>=9 or c in (2,3) else (6 if c==1 else 10)
        ys.append((H[c],src,10,j))
    wr(0,2,True); wr(25+1,6,False); wr(25+4,10,False)
    pend=[]
    ix=iy=0
    while ix<len(xs) or iy<len(ys):
        grp=[]; newp=[]
        ny = 1 if iy<2 else 2
        if ix>=len(xs): ny=3
        T=[12,14,16,42]; t=0
        if ix<len(xs):
            D,A_,B_,row=xs[ix]; ix+=1; grp.append((D,A_,B_,T[t])); t+=1; newp.append((row,D,True))
        for _ in range(ny):
            if iy<len(ys):
                D,A_,B_,j=ys[iy]; iy+=1; grp.append((D,A_,B_,T[t])); t+=1; newp.append((25+j,D,False))
        cgroup(grp)
        for p in newp: wr(*p)
    stamp(a,3)
    D=140
    for r in range(16): a(f"v_mov_b32 v{D+r}, 0")
    a("s_waitcnt lgkmcnt(0)")
    FR=20
    for s in range(16):
        if s<6: pass
    def rd(s): a(f"ds_read_b128 {vr(FR+8*(s%8),4)}, v3 offset:{s*32}\nds_read_b128 {vr(FR+8*(s%8)+4,4)}, v3 offset:{YOFF+s*32}")
    for s in range(6): rd(s)
    for s in range(16):
        a(f"s_waitcnt lgkmcnt({2*min(5,15-s)})")
        a(f"{MF} {vr(D,16)}, {vr(FR+8*(s%8),4)}, {vr(FR+8*(s%8)+4,4)}, {vr(D,16)}")
        if s+6<16: rd(s+6)
    stamp(a,4)
    P=296
    a(f"""
    s_mul_i32 s35, s29, {TBL[1]-TBL[0]}
    s_add_u32 s35, s35, {TBL[0]}
    s_mul_i32 s36, s29, {KD[1]-KD[0]}
    s_add_u32 s36, s36, {KD[0]}
    v_lshlrev_b32 v11, 16, v11
    v_cmp_eq_u32 vcc, 0, v1
    v_mul_u32_u24 v4, {4*P}, v13
    v_add_u32 v4, v4, v12
    v_cndmask_b32 v11, 0, v11, vcc
    v_lshlrev_b32 v4, 2, v4
    v_add_u32 v4, s35, v4
    v_sub_u32 v5, 63, v1
    v_lshlrev_b32 v5, 2, v5
    v_add_u32 v5, s35, v5
    v_and_b32 v6, 1, v1
    v_xor_b32 v6, 1, v6
    v_lshl_add_u32 v6, v6, 2, v5
    v_lshlrev_b32 v9, 4, v1
    v_add_u32 v9, s36, v9
    v_add_f32 v{D}, v{D}, v11
    """)
    AR=[0,1,2,3,256,258,512,768,1024,1280,1536,1792,2048]
    for r,av in enumerate(AR): a(f"ds_write_b32 v4, v{D+r} offset:{((av&7)*P+(av>>3)+1)*4}")
    a("s_waitcnt lgkmcnt(0)")
    def toff(rho,off): return ((off%8)*P+192-64*rho+(off//8)+1)*4
    rdm={}; reg=20
    for rho in (0,1):
        rdm[rho]={8:reg,0:reg+1,'t':reg+2}
        a(f"ds_read_b32 v{reg}, v5 offset:{toff(rho,8)}\nds_read_b32 v{reg+1}, v5 offset:{toff(rho,0)}\nds_read_b32 v{reg+2}, v6 offset:{toff(rho,0)}"); reg+=3
    rdm[2]={8:reg,4:reg+1,0:reg+2}
    a(f"ds_read_b32 v{reg}, v5 offset:{toff(2,8)}\nds_read_b32 v{reg+1}, v5 offset:{toff(2,4)}\nds_read_b32 v{reg+2}, v5 offset:{toff(2,0)}"); reg+=3
    rdm[3]={}
    for off in range(0,9): rdm[3][off]=reg; a(f"ds_read_b32 v{reg}, v5 offset:{toff(3,off)}"); reg+=1
    a("v_cmp_gt_u32 vcc, 32, v1\nv_mov_b32 v84, 0\nv_lshlrev_b32 v85, 2, v1\nv_add_u32 v85, s36, v85\ns_waitcnt lgkmcnt(0)")
    t=rdm[3]
    a(f"""
    v_cndmask_b32 v{t[7]}, v{t[7]}, v{t[8]}, vcc
    v_cndmask_b32 v{t[5]}, v{t[5]}, v{t[4]}, vcc
    v_cndmask_b32 v{t[3]}, v{t[3]}, v{t[4]}, vcc
    v_cndmask_b32 v{t[1]}, v{t[1]}, v{t[0]}, vcc
    """)
    el={}
    for rho in (0,1): r=rdm[rho]; el[rho]=[r[8],r[8],r[8],r['t'],r[0],r[0],r[0],r[0]]
    r=rdm[2]; el[2]=[r[8],r[8],r[4],r[4],r[4],r[0],r[0],r[0]]
    el[3]=[t[7-e] for e in range(8)]
    O=48
    for rho in range(4):
        e=el[rho]
        for i in range(4): a(f"v_cvt_pk_bf16_f32 v{O+rho*4+i}, v{e[2*i]}, v{e[2*i+1]}")
        a(f"ds_write_b128 v9, {vr(O+rho*4,4)} offset:{rho*1024}")
    a("ds_write_b32 v85, v84 offset:4096\ns_waitcnt lgkmcnt(0)")
    stamp(a,5)
    body=a.l[nstart:]; head=a.l[:nstart]
    cost=lambda l: 0 if l.endswith(':') else 8 if any(x in l for x in ('v_exp','v_sin','v_cos','ds_write')) else 32 if 'mfma' in l else 5
    tot=sum(map(cost,body)); step=tot/16.0
    if 'N' in OPT: step=0.0001; body=['    s_nop 0']*20+body
    out=[]; acc=0; nb=0
    for l in body:
        if nb<16 and acc>=nb*step: out.append("    s_barrier"); nb+=1
        out.append(l); acc+=cost(l)
    assert nb==16
    a0.ext(head+out); a0("s_barrier")

def conv(a):
    a(f"""
    s_and_b32 s29, s24, 1               ; ch
    s_bfe_u32 s28, s24, 0x10001         ; k
    s_mul_i32 s36, s29, {KD[1]-KD[0]}
    s_add_u32 s36, s36, {KD[0]}
    s_mul_i32 s37, s29, {KCP[1]-KCP[0]}
    s_add_u32 s37, s37, {KCP[0]}
    s_lshl_b32 s38, s28, 11
    v_lshlrev_b32 v7, 4, v1
    v_add_u32 v2, s38, v7
    v_add_u32 v3, s37, v2
    v_add_u32 v2, s36, v2
    ds_read_b128 v[16:19], v2
    ds_read_b64 v[20:21], v2 offset:16
    ds_read_b128 v[24:27], v2 offset:1024
    ds_read_b64 v[28:29], v2 offset:1040
    v_lshrrev_b32 v4, 4, v1
    v_mul_u32_u24 v4, {CST}, v4
    v_and_b32 v5, 15, v1
    v_lshl_add_u32 v4, v5, 2, v4
    v_add_u32 v4, s37, v4
    v_mov_b32 v5, 0
    ds_write_b32 v4, v5 offset:4096
    """)
    for r,(base) in enumerate((16,24)):
        a(f"s_waitcnt lgkmcnt({3 if r==0 else 5})")
        d=base; o=32+r*12
        a(f"ds_write_b128 v3, {vr(d,4)} offset:{r*1024}")
        for i in range(4): a(f"v_alignbit_b32 v{o+i}, v{d+i+1}, v{d+i}, 16")
        a(f"ds_write_b128 v3, {vr(o,4)} offset:{r*1024+CST}")
        for i in range(4): a(f"v_mov_b32 v{o+4+i}, v{d+1+i}")
        a(f"ds_write_b128 v3, {vr(o+4,4)} offset:{r*1024+2*CST}")
        for i in range(4): a(f"v_alignbit_b32 v{o+8+i}, v{d+i+2}, v{d+i+1}, 16")
        a(f"ds_write_b128 v3, {vr(o+8,4)} offset:{r*1024+3*CST}")
    a(f"""
    v_and_b32 v8, 31, v1
    v_lshrrev_b32 v9, 5, v1
    v_lshlrev_b32 v10, 3, v9
    v_sub_u32 v10, v10, v8
    v_add_u32 v10, 2063, v10
    v_and_b32 v11, 3, v10
    v_and_b32 v10, -4, v10
    v_lshlrev_b32 v10, 1, v10
    v_mul_u32_u24 v11, {CST}, v11
    v_add_u32 v10, v10, v11
    s_lshl_b32 s38, s28, 10
    s_sub_u32 s38, s37, s38
    s_sub_u32 s38, s38, {31*32}
    v_add_u32 v10, s38, v10
    v_subrev_u32 v11, 2048, v10
    v_mul_u32_u24 v12, 1536, v9
    v_lshl_add_u32 v12, v8, 4, v12
    s_mul_i32 s38, s29, 6144
    s_add_u32 s38, s38, {L_UA+512-15*16}
    s_lshl_b32 s39, s28, 8
    s_sub_u32 s38, s38, s39
    v_add_u32 v12, s38, v12             ; B addr
    """)
    C=[64,80]
    for r in range(32): a(f"v_mov_b32 v{64+r}, 0")
    a("s_waitcnt vmcnt(0) lgkmcnt(0)\ns_barrier")
    stamp(a,6)
    F=96
    def rd(s):
        b=F+16*(s%3); o=(31-s)*4
        a(f"ds_read2_b64 {vr(b,4)}, v10 offset0:{o} offset1:{o+1}")
        a(f"ds_read_b128 {vr(b+8,4)}, v12 offset:{(3072 if s%2==0 else 0)+(15-(s>>1))*16}")
        a(f"ds_read_b128 {vr(b+12,4)}, v12 offset:{(3072 if s%2==0 else 0)+(15-(s>>1))*16+512}")
        a(f"ds_read2_b64 {vr(b+4,4)}, v11 offset0:{o} offset1:{o+1}")
    rd(0); rd(1)
    for s in range(32):
        b=F+16*(s%3)
        if s+2<32: rd(s+2)
        a(f"s_waitcnt lgkmcnt({4*min(2,31-s)})")
        a(f"{MF} {vr(C[0],16)}, {vr(b,4)}, {vr(b+8,4)}, {vr(C[0],16)}")
        a(f"{MF} {vr(C[1],16)}, {vr(b,4)}, {vr(b+12,4)}, {vr(C[1],16)}")
        a(f"{MF} {vr(C[1],16)}, {vr(b+4,4)}, {vr(b+8,4)}, {vr(C[1],16)}")
    stamp(a,7)
    a(f"""
    s_mul_i32 s35, s29, {TBL[1]-TBL[0]}
    s_add_u32 s35, s35, {TBL[0]}
    s_lshl_b32 s36, s28, 12
    s_add_u32 s37, s35, s36
    s_xor_b32 s36, s36, 4096
    s_add_u32 s36, s35, s36
    v_add_u32 v2, s37, v7
    v_add_u32 v3, s36, v7
    s_lshl_b32 s33, s2, 1
    s_add_u32 s33, s33, s29
    s_lshl_b32 s33, s33, 12
    s_lshl_b32 s34, s28, 11
    s_add_u32 s33, s33, s34
    s_add_u32 s33, s33, {BT}
    v_lshlrev_b32 v4, 6, v8
    v_lshl_add_u32 v4, v9, 4, v4
    s_cmp_eq_u32 s28, 0
    s_cbranch_scc1 KA_CX0
    """)
    for g in range(4): a(f"ds_write_b128 v2, {vr(C[0]+4*g,4)} offset:{g*1024}")
    for r in range(16): a(f"v_mov_b32 v{C[0]+r}, v{C[1]+r}")
    a("s_branch KA_CX1\nKA_CX0:")
    for g in range(4): a(f"ds_write_b128 v2, {vr(C[1]+4*g,4)} offset:{g*1024}")
    a("KA_CX1:\ns_waitcnt lgkmcnt(0)\ns_barrier")
    for g in range(4): a(f"ds_read_b128 {vr(F+4*g,4)}, v3 offset:{g*1024}")
    a("s_waitcnt lgkmcnt(0)")
    for r in range(16): a(f"v_add_f32 v{C[0]+r}, v{C[0]+r}, v{F+r}")
    for k in range(8): a(f"v_cvt_pk_bf16_f32 v{C[0]+k}, v{C[0]+2*k}, v{C[0]+2*k+1}")
    for p in range(2):
        a(f"v_permlane32_swap_b32 v{C[0]+4*p}, v{C[0]+4*p+2}\nv_permlane32_swap_b32 v{C[0]+4*p+1}, v{C[0]+4*p+3}")
        a(f"buffer_store_dwordx4 {vr(C[0]+4*p,4)}, v4, s[20:23], s33 offen offset:{32*p}{SC}")

def prologue(a):
    a("s_cmp_ge_u32 s2, 256\ns_cbranch_scc1 KA_END")
    stamp(a,0); stamp(a,1,True)
    if 'I' in OPT:
        a("""
        s_getpc_b64 s[98:99]
        KA_PC:
        v_lshlrev_b32 v2, 7, v0
        v_min_u32 v2, KA_END-KA_PC, v2
        global_load_dword v224, v2, s[98:99]
        """)
    a("""
    s_load_dwordx4 s[4:7], s[0:1], 0
    s_load_dwordx4 s[8:11], s[0:1], 112
    s_load_dwordx8 s[40:47], s[0:1], 32
    s_load_dwordx8 s[48:55], s[0:1], 64
    s_load_dwordx2 s[56:57], s[0:1], 96
    v_lshrrev_b32 v2, 6, v0
    v_and_b32 v1, 63, v0
    v_readfirstlane_b32 s24, v2
    s_and_b32 s30, s2, 7
    s_lshr_b32 s31, s2, 3
    s_lshr_b32 s25, s30, 1
    s_lshl_b32 s25, s25, 3
    s_and_b32 s32, s31, 7
    s_add_u32 s25, s25, s32
    s_and_b32 s26, s30, 1
    s_lshl_b32 s26, s26, 2
    s_lshr_b32 s32, s31, 3
    s_add_u32 s26, s26, s32
    s_waitcnt lgkmcnt(0)
    """)
    stamp(a,8)
    srd(a,12,4,0x200000); srd(a,16,6,512*1536*2); srd(a,20,10,WS_SIZE); srd(a,60,8,256)
    if 'S' in OPT:
        a(f"""
        s_lshl_b32 s32, s2, 9
        s_lshl_b32 s33, s24, 7
        s_and_b32 s33, s33, 0x180
        s_add_u32 s32, s32, s33
        s_load_dword s58, s[40:41], s32
        s_load_dword s58, s[42:43], s32
        s_load_dword s58, s[44:45], s32
        s_load_dword s58, s[46:47], s32
        s_load_dword s58, s[48:49], s32
        s_load_dword s58, s[50:51], s32
        s_load_dword s58, s[52:53], 0
        s_load_dword s58, s[54:55], 0
        s_load_dword s58, s[56:57], 0
        s_load_dword s58, s[4:5], 0
        s_load_dword s58, s[6:7], 0
        """)

def ka():
    a=A()
    prologue(a)
    a("""
    s_cmp_eq_u32 s24, 4
    s_cbranch_scc1 KA_LX
    s_cmp_eq_u32 s24, 5
    s_cbranch_scc1 KA_LW
    s_cmp_ge_u32 s24, 6
    s_cbranch_scc1 KA_KG
    """)
    compute(a)
    a("s_branch KA_FIN\nKA_LX:"); loader(a,False)
    a("s_branch KA_CONV\nKA_LW:"); loader(a,True)
    a("s_branch KA_CONV\nKA_KG:"); kgen(a)
    a("KA_CONV:"); conv(a)
    a("KA_FIN:")
    stamp_out(a,0,8)
    a("KA_END:\ns_endpgm")
    return a.l, dict(vgpr=232, sgpr=100, grid=256, block=512, lds=163840)
if __name__=="__main__":
    for p in range(192): assert (p*171)>>12==p//24 and (p*171)>>11==p//12
```

```python
from asmlib import *
from k1 import f32, LOG2E, srd, QF,KF,VF,OF,XT,BT,G,WS_SIZE
import math, struct, os
OPT=os.environ.get("OPTF","")
MF="v_mfma_f32_32x32x16_bf16"
FL=0x1110000; FLX=FL; FLQ=FL+0x2000; FLB=FL+0x4000; FLG=FL+0x5000; FLO=FL+0x8000
RINGW=61440; WST=12288; NW=5; RINGX=RINGW+NW*WST; XST=8192; NX=3; L_XS=RINGW+4*WST; L_UA=147456
VST=1056; L_V=65536
KCP=[L_V+16*VST, L_V+48*VST]; CST=4192
TBL=[16384,49152]; KD=[26112,44800]
L_Q=L_V+64*VST; L_X=L_Q+12288; XS=2176; L_FLAG=L_X+8*XS; L_EP=L_FLAG+4
SC=" sc1"
SPIN=400000
class VM:
    def __init__(s): s.q=[]
    def add(s,t,n=1): s.q+= [t]*n
    def wait(s,t):
        i=max(k for k,x in enumerate(s.q) if x==t); return len(s.q)-1-i
lab=[0]
def get_epoch(a, vt):
    lab[0]+=1; L=f"EP{lab[0]}"
    a(f"""
    v_mov_b32 v{vt}, 0
    s_mov_b32 s67, {SPIN}
    {L}:
    buffer_load_dword v{vt+1}, v{vt}, s[60:63], 0 offen sc0 sc1
    s_sub_u32 s67, s67, 1
    s_waitcnt vmcnt(0)
    v_readfirstlane_b32 s66, v{vt+1}
    s_cmp_eq_u32 s67, 0
    s_cbranch_scc1 {L}_X
    s_cmp_eq_u32 s66, 0
    s_cbranch_scc1 {L}
    {L}_X:
    """)
def poll(a, voff, vdat, soff):
    lab[0]+=1; L=f"PL{lab[0]}"
    a(f"""
    s_mov_b32 s67, {SPIN}
    {L}:
    buffer_load_dword v{vdat}, v{voff}, s[20:23], s{soff} offen sc0 sc1
    s_sub_u32 s67, s67, 1
    s_waitcnt vmcnt(0)
    v_cmp_ne_u32 vcc, s66, v{vdat}
    s_cmp_eq_u32 s67, 0
    s_cbranch_scc1 {L}_X
    s_cbranch_vccnz {L}
    {L}_X:
    """)
def set_flag(a, vt, *soffs):
    a(f"v_mov_b32 v{vt}, 0\nv_mov_b32 v{vt+1}, s66\ns_mov_b64 exec, 1")
    for so in soffs: a(f"buffer_store_dword v{vt+1}, v{vt}, s[20:23], s{so} offen sc0 sc1")
    a("s_mov_b64 exec, -1")
def lds_epoch(a, vt):
    a(f"v_mov_b32 v{vt}, {L_EP}\nds_read_b32 v{vt}, v{vt}\ns_waitcnt lgkmcnt(0)\nv_readfirstlane_b32 s66, v{vt}")

YOFF=25*528
def chain(a, isX):
    a(f"""
    s_and_b32 s29, s24, 1
    s_lshl_b32 s27, s2, 1
    s_add_u32 s27, s27, s29             ; d
    s_lshl_b32 s28, s27, 8
    v_lshlrev_b32 v2, 2, v1
    v_add_u32 v2, s28, v2
    s_lshl_b32 s28, s27, 1
    v_mov_b32 v3, s28
    global_load_ushort v10, v3, s[52:53]
    global_load_dword v4, v2, s[40:41]
    global_load_dword v5, v2, s[42:43]
    """)
    if isX: a("global_load_dword v6, v2, s[44:45]\nglobal_load_dword v7, v2, s[46:47]\nglobal_load_dword v8, v2, s[48:49]\nglobal_load_dword v9, v2, s[50:51]")
    a(f"""
    s_barrier
    s_mul_i32 s28, s29, 30720
    v_lshlrev_b32 v2, 3, v1
    v_add_u32 v2, s28, v2
    s_mov_b32 s32, {f32(LOG2E)}
    s_mov_b32 s33, {f32(LOG2E-struct.unpack('<f',struct.pack('<f',LOG2E))[0])}
    s_mov_b32 s34, {f32(math.log(2))}
    s_mov_b32 s35, {f32(1/(2*math.pi))}
    s_mov_b32 s36, 0xffff0000
    s_waitcnt vmcnt({4 if isX else 0})
    """)
    stamp(a,9)
    a(f"""
    v_lshlrev_b32 v10, 16, v10
    v_mul_f32 v14, s32, v10
    v_exp_f32 v15, v14
    v_fma_f32 v16, v10, s32, -v14
    v_fma_f32 v16, v10, s33, v16
    v_mul_f32 v16, s34, v16
    v_fma_f32 v15, v15, v16, v15
    v_cvt_pk_bf16_f32 v15, v15, v15
    v_and_b32 v15, s36, v15
    """)
    S=[20,70]
    F=lambda t:[a(t.format(**{f"b{k}":b+k for k in range(50)})) for b in S]
    for k in range(2):
        a(f"v_lshlrev_b32 v{S[0]+30+k}, 16, v{4+k}\nv_and_b32 v{S[1]+30+k}, s36, v{4+k}")
    for t in ("v_mul_f32 v{b30}, v15, v{b30}","v_mul_f32 v{b31}, v15, v{b31}","v_mul_f32 v{b0}, s32, v{b30}","v_mul_f32 v{b1}, s35, v{b31}"): F(t)
    ev = ((4,1.0),(8,256.0),(6,2.0)) if isX else ((6,8.0),(10,32.0))
    for (E,k) in ev:
        for t in (f"v_mul_f32 v{{b30}}, {f32(k)}, v{{b0}}",f"v_mul_f32 v{{b31}}, {f32(k)}, v{{b1}}","v_fract_f32 v{b31}, v{b31}","v_exp_f32 v{b30}, v{b30}","v_cos_f32 v{b32}, v{b31}","v_sin_f32 v{b33}, v{b31}",
                  f"v_mul_f32 v{{b{E}}}, v{{b30}}, v{{b32}}",f"v_mul_f32 v{{b{E+1}}}, v{{b30}}, v{{b33}}"): F(t)
    PK=[120,122,124,126,128,130]; pkc=[0]
    def wr(row,regoff,neg):
        p=PK[pkc[0]%6]; pkc[0]+=1
        for x,b in enumerate(S): a(f"v_cvt_pk_bf16_f32 v{p+x}, v{b+regoff}, {'-' if neg else ''}v{b+regoff+1}")
        a(f"ds_write_b64 v2, {vr(p,2)} offset:{row*528}")
    T=[12,14,16,42]
    def cgroup(ops,neg):
        for t,(D,A_,B_,row) in enumerate(ops):
            for b in S: a(f"v_pk_mul_f32 {vr(b+T[t],2)}, {vr(b+A_,2)}, {vr(b+B_,2)} op_sel:[0,0] op_sel_hi:[0,1]")
        for t,(D,A_,B_,row) in enumerate(ops):
            for b in S: a(f"v_pk_fma_f32 {vr(b+D,2)}, {vr(b+A_,2)}, {vr(b+B_,2)}, {vr(b+T[t],2)} op_sel:[1,1,0] op_sel_hi:[1,0,1] neg_lo:[1,0,0]")
        for (D,A_,B_,row) in ops: wr(row,D,neg)
    if isX:
        a("s_waitcnt vmcnt(0)")
        for k in range(2,6): a(f"v_lshlrev_b32 v{S[0]+30+k}, 16, v{4+k}\nv_and_b32 v{S[1]+30+k}, s36, v{4+k}")
        for t in ("v_mul_f32 v{b32}, v15, v{b32}","v_mul_f32 v{b33}, v15, v{b33}","v_mul_f32 v{b2}, v{b34}, v{b32}","v_mul_f32 v{b3}, v{b34}, v{b33}",
                  "v_fma_f32 v{b2}, -v{b35}, v{b33}, v{b2}","v_fma_f32 v{b3}, v{b35}, v{b32}, v{b3}"): F(t)
        wr(0,2,True)
        cgroup([(36,2,4,1),(22,2,6,2),(38,2,8,8)],True)
        cgroup([(36,36,6,3),(24,22,6,4),(38,38,8,10),(40,22,8,9)],True)
        cgroup([(36,36,6,5),(26,24,6,6),(38,38,8,11),(40,24,8,12)],True)
        cgroup([(36,36,6,7),(26,26,8,13),(38,38,8,16),(40,40,8,14)],True)
        cgroup([(38,38,8,17),(40,40,8,15)],True)
        cgroup([(38,38,8,18)],True); cgroup([(38,38,8,19)],True); cgroup([(38,38,8,24)],True)
    else:
        a(f"v_mov_b32 v132, 0x00003f80\nv_mov_b32 v133, 0x00003f80\nds_write_b64 v2, v[132:133] offset:{YOFF}")
        wr(26,6,False); wr(29,10,False)
        cgroup([(18,6,6,27),(38,6,10,30),(40,10,10,33)],False)
        cgroup([(20,18,6,28),(38,38,10,34),(40,40,10,37)],False)
        nx={0:16,1:13,2:6,3:7}; H={1:38,2:18,3:20,0:40}
        while any(v<32 for v in nx.values()):
            ops=[]
            for c in (2,3,1,0):
                if nx[c]<32: ops.append((H[c],H[c],10,25+nx[c])); nx[c]+=4
            cgroup(ops,False)

def compute(a):
    a("s_cmp_ge_u32 s24, 2\ns_cbranch_scc1 KF_CX")
    chain(a,False)
    a("s_branch KF_CMAIN\nKF_CX:")
    chain(a,True)
    a("KF_CMAIN:")
    vXr=[4,5,6,7]; vWr=8; vT=10; vT2=11; vT3=12
    a(f"""
    s_and_b32 s39, s24, 1               ; r2
    s_lshr_b32 s64, s24, 1              ; hh
    s_lshl_b32 s29, s39, 12
    s_add_u32 s29, s29, {RINGX}
    v_and_b32 v{vT}, 31, v1
    v_lshrrev_b32 v{vT2}, 5, v1
    v_lshrrev_b32 v{vT3}, 1, v{vT}
    v_xor_b32 v{vT3}, v{vT3}, v{vT2}
    v_and_b32 v{vT3}, 7, v{vT3}
    v_lshlrev_b32 v{vXr[0]}, 7, v{vT}
    v_lshl_add_u32 v{vXr[0]}, v{vT3}, 4, v{vXr[0]}
    v_add_u32 v{vXr[0]}, s29, v{vXr[0]}
    v_xor_b32 v{vXr[1]}, 32, v{vXr[0]}
    v_xor_b32 v{vXr[2]}, 64, v{vXr[0]}
    v_xor_b32 v{vXr[3]}, 0x60, v{vXr[0]}
    v_mul_u32_u24 v{vWr}, 3072, v{vT2}
    v_bfe_u32 v{vT}, v1, 2, 2
    v_mul_u32_u24 v{vT3}, 384, v{vT}
    v_add_u32 v{vWr}, v{vWr}, v{vT3}
    v_lshrrev_b32 v{vT}, 1, v{vT}
    v_xor_b32 v{vT}, s64, v{vT}
    v_lshl_add_u32 v{vWr}, v{vT}, 6, v{vWr}
    v_bfe_u32 v{vT}, v1, 4, 1
    v_lshl_add_u32 v{vWr}, v{vT}, 5, v{vWr}
    v_and_b32 v{vT}, 3, v1
    v_lshl_add_u32 v{vWr}, v{vT}, 3, v{vWr}
    v_add_u32 v{vWr}, {RINGW}, v{vWr}
    """)
    ACC=[136,152,168]
    SET=[16,48]
    def rlist(c):
        st=SET[c&1]; L=[]
        for s in range(2):
            L.append(f"ds_read_b128 {vr(st+4*s,4)}, v{vXr[2*(c&1)+s]} offset:{((c>>1)%NX)*XST}")
            for seg in range(3):
                for q in range(2): L.append(f"ds_read_b64_tr_b16 {vr(st+8+(s*3+seg)*4+2*q,2)}, v{vWr} offset:{(c%NW)*WST+s*6144+q*1536+seg*128}")
        return L
    def mlist(c):
        st=SET[c&1]; L=[]
        for s in range(2):
            x=vr(st+4*s,4)
            for seg in range(3):
                w=vr(st+8+(s*3+seg)*4,4); d=vr(ACC[seg],16); cc = "0" if (c==0 and s==0) else d
                L.append(f"{MF} {d}, {w}, {x}, {cc}" if seg<2 else f"{MF} {d}, {x}, {w}, {cc}")
        return L
    a(f"""
    s_lshl_b32 s33, s25, 1
    s_add_u32 s33, s33, s39             ; tile32
    s_lshl_b32 s34, s26, 1
    s_add_u32 s34, s34, s64
    s_lshl_b32 s68, s34, 8
    s_lshl_b32 s69, s33, 2
    s_add_u32 s68, s68, s69
    s_add_u32 s68, s68, {FLQ}
    s_lshl_b32 s33, s33, 10
    s_lshl_b32 s34, s34, 17
    s_add_u32 s33, s33, s34
    s_add_u32 s34, s33, 0x10000
    s_add_u32 s35, s33, {KF}
    s_add_u32 s36, s33, {KF+0x10000}
    s_add_u32 s37, s33, {VF}
    s_mov_b32 s38, {f32(0.25*LOG2E)}
    v_lshlrev_b32 v{vT}, 4, v1
    v_bfe_u32 v{vT2}, v1, 4, 1
    v_lshlrev_b32 v{vT2}, 16, v{vT2}
    v_lshrrev_b32 v{vT3}, 5, v1
    v_lshl_add_u32 v{vT2}, v{vT3}, 8, v{vT2}
    v_and_b32 v{vT3}, 15, v1
    v_lshl_add_u32 v{vT2}, v{vT3}, 4, v{vT2}
    """)
    if 'W' in OPT:
        for so,vv in ((33,vT),(34,vT),(35,vT),(36,vT),(37,vT2),(68,13)):
            pass
    a("s_waitcnt lgkmcnt(0)")
    stamp(a,2)
    for c in range(16):
        a("s_barrier")
        if c==12 and 'W' in OPT:
            a("s_mov_b64 exec, 0x10001")
            for so,vv in ((33,vT),(34,vT),(35,vT),(36,vT),(37,vT2)): a(f"buffer_load_dword v225, v{vv}, s[20:23], s{so} offen")
            a("s_mov_b64 exec, -1")
        if c==0: dstamp(a,2)
        if 'F' in OPT:
            F0=int(os.environ.get("F0","2"))
            if F0<=c<F0+8: stamp(a,2+c-F0)
        else:
            if c in (0,8): stamp(a,3+c//8)
            if c==4: stamp(a,7)
        R=rlist(c); M=mlist(c-1) if c>0 else []
        k=0
        for i,m in enumerate(M):
            a(m)
            for r in R[k:k+3]: a(r)
            k+=3
        for r in R[k:]: a(r)
        a("s_waitcnt lgkmcnt(0)")
    a("s_barrier")
    for m in mlist(15): a(m)
    if 'F' not in OPT: stamp(a,5)
    dstamp(a,3)
    for seg in (1,2,0):
        if seg==0:
            for r in range(16): a(f"v_mul_f32 v{ACC[0]+r}, s38, v{ACC[0]+r}")
        for i in range(8): a(f"v_cvt_pk_bf16_f32 v{96+seg*8+i}, v{ACC[seg]+2*i}, v{ACC[seg]+2*i+1}")
        if seg==1: a(f"buffer_store_dwordx4 v[104:107], v{vT}, s[20:23], s35 offen{SC}\nbuffer_store_dwordx4 v[108:111], v{vT}, s[20:23], s36 offen{SC}")
        if seg==2: a(f"buffer_store_dwordx4 v[112:115], v{vT2}, s[20:23], s37 offen{SC}\nbuffer_store_dwordx4 v[116:119], v{vT2}, s[20:23], s37 offen offset:512{SC}")
        if seg==0: a(f"buffer_store_dwordx4 v[96:99], v{vT}, s[20:23], s33 offen{SC}\nbuffer_store_dwordx4 v[100:103], v{vT}, s[20:23], s34 offen{SC}")
    lds_epoch(a,13)
    a("s_barrier")

def loader(a, isW):
    vm=VM()
    for i in range(3):
        a(f"""
        v_add_u32 v8, {64*i}, v1
        v_mul_u32_u24 v9, 171, v8
        v_lshrrev_b32 v9, 12, v9
        v_mul_u32_u24 v10, 24, v9
        v_sub_u32 v10, v8, v10
        v_mul_u32_u24 v{2+i}, 3072, v9
        v_lshrrev_b32 v11, 3, v10
        v_lshl_add_u32 v{2+i}, v11, 10, v{2+i}
        v_lshlrev_b32 v11, 1, v9
        v_and_b32 v11, 4, v11
        v_xor_b32 v11, v11, v10
        v_and_b32 v11, 7, v11
        v_lshl_add_u32 v{2+i}, v11, 4, v{2+i}
        v_subrev_u32 v{2+i}, {1024*i}, v{2+i}
        """)
    a("""
    s_setprio 3
    s_lshl_b32 s27, s26, 7
    s_lshr_b32 s35, s31, 3
    s_lshl_b32 s35, s35, 1
    s_add_u32 s35, s35, s31
    """)
    if 'Z' in OPT: a("s_mov_b32 s35, 0")
    if 'H' in OPT: a("s_and_b32 s35, s35, 1\ns_lshl_b32 s35, s35, 2")
    if 'T' in OPT:
        if not isW:
            a(f"""
            v_and_b32 v12, 15, v1
            v_lshlrev_b32 v12, 10, v12
            v_lshrrev_b32 v9, 4, v1
            v_lshl_add_u32 v12, v9, 7, v12
            s_lshr_b32 s33, s30, 1
            s_lshl_b32 s33, s33, 19
            s_lshl_b32 s34, s31, 14
            s_add_u32 s37, s33, s34
            """)
        else:
            a(f"""
            v_mul_u32_u24 v9, 171, v1
            v_lshrrev_b32 v9, 11, v9
            v_mul_u32_u24 v10, 12, v9
            v_sub_u32 v10, v1, v10
            v_lshrrev_b32 v12, 1, v9
            v_lshlrev_b32 v12, 6, v12
            v_and_b32 v13, 1, v9
            v_add_u32 v12, v12, v13
            v_mul_u32_u24 v12, 3072, v12
            v_lshrrev_b32 v13, 2, v10
            v_lshl_add_u32 v12, v13, 10, v12
            v_and_b32 v13, 3, v10
            v_lshl_add_u32 v12, v13, 7, v12
            v_mov_b32 v13, 0x40000000
            v_cmp_lt_u32 vcc, 47, v1
            v_cndmask_b32 v12, v12, v13, vcc
            s_and_b32 s33, s30, 1
            s_lshl_b32 s33, s33, 9
            s_mul_i32 s34, s31, 6144
            s_add_u32 s37, s33, s34
            """)
    def touch(k):
        if 'T' not in OPT: return
        if isW: a(f"s_add_u32 s38, s37, {k*128*3072}\nbuffer_load_dword v14, v12, s[16:19], s38 offen"); vm.add('T')
        elif k%2==0: a(f"buffer_load_dword v14, v12, s[12:15], s37 offen offset:{256*k}"); vm.add('T')
    TP=[int(x) for x in os.environ.get("TP","0,0,0,0").split(",")]
    def T(pos):
        for k in range(4):
            if TP[k]==pos: touch(k)
    if not isW:
        a(f"""
        v_lshrrev_b32 v5, 3, v1
        v_lshlrev_b32 v5, 10, v5
        v_lshrrev_b32 v8, 4, v1
        v_xor_b32 v8, v8, v1
        v_and_b32 v8, 7, v8
        v_lshl_add_u32 v5, v8, 4, v5
        v_xor_b32 v6, 64, v5
        v_add_u32 v6, 7168, v6
        v_add_u32 v7, 14336, v5
        v_add_u32 v15, 14336, v6
        s_lshl_b32 s28, s25, 16
        """)
    WI=list(range(3,12)) if isW else list(range(3))
    def issueW(c):
        a(f"s_add_u32 s36, s35, {c>>1}\ns_and_b32 s36, s36, 7\ns_mul_i32 s36, s36, {64*3072}\ns_add_u32 s36, s36, s27")
        for i in WI:
            if i%3==0: a(f"s_mov_b32 m0, {RINGW+(c%NW)*WST+i*1024}\ns_add_u32 s{33+(i//3)%2}, s36, {(32*(c&1)+8*(i//3))*3072}")
            a(f"buffer_load_dwordx4 v{2+i%3}, s[16:19], s{33+(i//3)%2} offen offset:{1024*(i%3)} lds")
        vm.add(('W',c),len(WI))
    def issueX(q,half):
        if isW: return
        a(f"s_add_u32 s36, s35, {q}\ns_and_b32 s36, s36, 7\ns_lshl_b32 s36, s36, 7\ns_add_u32 s36, s36, s28")
        a(f"s_mov_b32 m0, {RINGX+(q%NX)*XST+half*4096}\ns_add_u32 s34, s36, {32768*half}")
        for i,v in enumerate((5,6,7,15)): a(f"buffer_load_dwordx4 v{v}, s[12:15], s34 offen offset:{1024*i} lds")
        vm.add(('X',q),4)
    a("s_barrier")
    T(0); issueX(0,0); issueX(0,1); issueW(0); T(1); issueW(1); T(2); issueX(1,0); issueX(1,1); issueW(2); issueW(3)
    stamp(a,2)
    for c in range(16):
        n=vm.wait(('W',c))
        if not isW: n=min(n,vm.wait(('X',c>>1)))
        a(f"s_waitcnt vmcnt({n})\ns_barrier")
        if (c>>1)+2<8: issueX((c>>1)+2,c&1)
        if c+4<16: issueW(c+4)
    stamp(a,3)
    a("s_setprio 0\ns_barrier")
    a(f"""
    v_mov_b32 v14, 0
    v_mov_b32 v15, 0
    v_lshlrev_b32 v3, 3, v1
    v_add_u32 v3, {L_UA+(6144 if isW else 0)}, v3
    ds_write_b64 v3, v[14:15]
    ds_write_b64 v3, v[14:15] offset:1536
    ds_write_b64 v3, v[14:15] offset:3072
    ds_write_b64 v3, v[14:15] offset:4608
    """)
    lds_epoch(a,13)

def helper(a):
    a(f"""
    s_sub_u32 s29, s24, 6
    s_lshl_b32 s39, s2, 1
    s_add_u32 s39, s39, s29             ; d
    s_cmp_lg_u32 s39, 0
    s_cbranch_scc1 KF_NOEP
    s_memrealtime s[68:69]
    v_mov_b32 v16, 0
    s_waitcnt lgkmcnt(0)
    s_or_b32 s68, s68, 1
    v_mov_b32 v17, s68
    s_mov_b64 exec, 1
    buffer_store_dword v17, v16, s[60:63], 0 offen sc0 sc1
    s_mov_b64 exec, -1
    KF_NOEP:
    s_lshl_b32 s28, s26, 1
    s_add_u32 s28, s28, s29             ; db32
    s_lshl_b32 s27, s25, 16
    s_lshl_b32 s32, s28, 6
    s_add_u32 s27, s27, s32
    s_mul_i32 s71, s29, 6144
    s_add_u32 s71, s71, {L_UA}
    v_lshrrev_b32 v2, 2, v1
    v_lshlrev_b32 v2, 10, v2
    v_and_b32 v3, 3, v1
    v_lshl_add_u32 v2, v3, 4, v2
    s_mov_b32 m0, s71
    s_add_u32 s32, s27, {16384-1024}
    s_add_u32 s33, s27, {32768-2048}
    s_add_u32 s34, s27, {49152-3072}
    buffer_load_dwordx4 v2, s[12:15], s27 offen lds
    buffer_load_dwordx4 v2, s[12:15], s32 offen offset:1024 lds
    buffer_load_dwordx4 v2, s[12:15], s33 offen offset:2048 lds
    buffer_load_dwordx4 v2, s[12:15], s34 offen offset:3072 lds
    s_lshl_b32 s37, s25, 4
    s_add_u32 s37, s37, s28
    s_lshl_b32 s38, s37, 12
    v_lshlrev_b32 v7, 4, v1
    global_load_dwordx4 v[160:163], v7, s[56:57]
    buffer_load_dwordx4 v[164:167], v7, s[12:15], s38 offen
    buffer_load_dwordx4 v[168:171], v7, s[12:15], s38 offen offset:1024
    buffer_load_dwordx4 v[172:175], v7, s[12:15], s38 offen offset:2048
    buffer_load_dwordx4 v[176:179], v7, s[12:15], s38 offen offset:3072
    s_lshl_b32 s38, s39, 1
    v_mov_b32 v3, s38
    global_load_ushort v110, v3, s[54:55]
    s_barrier
    v_lshrrev_b32 v9, 4, v1
    v_lshlrev_b32 v10, 9, v9
    v_bfe_u32 v11, v1, 2, 2
    v_lshl_add_u32 v10, v11, 6, v10
    v_and_b32 v11, 3, v1
    v_lshl_add_u32 v10, v11, 3, v10
    v_add_u32 v10, s71, v10
    v_and_b32 v11, 15, v1
    v_lshlrev_b32 v11, 12, v11
    v_lshl_add_u32 v11, v9, 4, v11
    s_lshl_b32 s32, s28, 17
    s_lshl_b32 s33, s25, 7
    s_add_u32 s32, s32, s33
    s_add_u32 s32, s32, {XT}
    s_add_u32 s33, s32, 65536
    s_lshl_b32 s68, s28, 8
    s_lshl_b32 s34, s25, 2
    s_add_u32 s68, s68, s34
    s_add_u32 s68, s68, {FLX}
    s_lshr_b32 s69, s2, 4
    s_lshl_b32 s69, s69, 8
    s_add_u32 s69, s69, {FLX}
    s_mov_b32 s34, 0xffff0000
    s_mov_b32 s35, {f32(-LOG2E)}
    s_mul_i32 s28, s29, 30720
    v_and_b32 v12, 31, v1
    v_lshrrev_b32 v13, 5, v1
    v_mul_u32_u24 v3, 528, v12
    v_lshl_add_u32 v3, v13, 4, v3
    v_add_u32 v3, s28, v3
    v_mov_b32 v108, 0
    s_waitcnt vmcnt(6)
    """)
    k=0
    for dh in range(2):
        for th in range(2):
            for q in range(2): a(f"ds_read_b64_tr_b16 {vr(192+k*4+2*q,2)}, v10 offset:{th*2048+q*256+dh*32}")
            k+=1
    a("s_waitcnt lgkmcnt(0)")
    k=0
    for dh in range(2):
        for th in range(2):
            a(f"buffer_store_dwordx4 {vr(192+k*4,4)}, v11, s[20:23], s{32+dh} offen offset:{th*64}{SC}"); k+=1
    a("buffer_load_dword v109, v108, s[60:63], 0 offen sc0 sc1\ns_waitcnt vmcnt(5)")
    g=A()
    for i in range(4): g(f"v_lshlrev_b32 v{112+2*i}, 16, v{160+i}\nv_and_b32 v{113+2*i}, s34, v{160+i}")
    for rho in range(4):
        src=164+4*rho; acc=100+rho
        for i in range(4): g(f"v_lshlrev_b32 v{120+2*i}, 16, v{src+i}\nv_and_b32 v{121+2*i}, s34, v{src+i}")
        for i in range(8): g(f"v_mul_f32 v{120+i}, v{120+i}, v{112+i}")
        for i in range(4): g(f"v_cvt_pk_bf16_f32 v{128+i}, v{120+2*i}, v{121+2*i}")
        for i in range(4): g(f"v_lshlrev_b32 v{120+2*i}, 16, v{128+i}\nv_and_b32 v{121+2*i}, s34, v{128+i}")
        for i in range(4): g(f"v_add_f32 v{120+i}, v{120+i}, v{124+i}")
        g(f"v_add_f32 v120, v120, v122\nv_add_f32 v121, v121, v123\nv_add_f32 v{acc}, v120, v121")
    for mod in ("row_shr:1","row_shr:2","row_shr:4","row_shr:8"):
        for rho in range(4): g(f"v_add_f32_dpp v{100+rho}, v{100+rho}, v{100+rho} {mod} row_mask:0xf bank_mask:0xf bound_ctrl:0")
    for mod,rm in (("row_bcast:15","0xa"),("row_bcast:31","0xc")):
        for rho in range(4): g(f"v_add_f32_dpp v{100+rho}, v{100+rho}, v{100+rho} {mod} row_mask:{rm} bank_mask:0xf")
    for op in ("v_cvt_pk_bf16_f32 v{r}, v{r}, v{r}","v_and_b32 v{r}, s34, v{r}","v_mul_f32 v{r}, s35, v{r}","v_exp_f32 v{r}, v{r}","v_add_f32 v{r}, 1.0, v{r}",
               "v_rcp_f32 v{r}, v{r}","v_cvt_pk_bf16_f32 v{r}, v{r}, v{r}","v_and_b32 v{r}, s34, v{r}"):
        for rho in range(4): g(op.format(r=100+rho))
    GL=g.l; per=(len(GL)+5)//6
    stamp(a,2)
    a("s_barrier")
    D=140; FR=20
    def rd(s): a(f"ds_read_b128 {vr(FR+8*(s%8),4)}, v3 offset:{s*32}\nds_read_b128 {vr(FR+8*(s%8)+4,4)}, v3 offset:{YOFF+s*32}")
    for s in range(6): rd(s)
    for s in range(16):
        a(f"s_waitcnt lgkmcnt({2*min(5,15-s)})")
        a(f"{MF} {vr(D,16)}, {vr(FR+8*(s%8),4)}, {vr(FR+8*(s%8)+4,4)}, {'0' if s==0 else vr(D,16)}")
        if s+6<16: rd(s+6)
        if s%3==2: a("s_barrier")
        if s==8:
            a("s_waitcnt vmcnt(0)\nv_readfirstlane_b32 s66, v109\ns_cmp_lg_u32 s66, 0\ns_cbranch_scc1 KF_EPOK")
            get_epoch(a,108)
            a("KF_EPOK:")
            set_flag(a,108,68)
    for k in range(6):
        a.ext(GL[k*per:(k+1)*per])
        if k==4: a("v_lshlrev_b32 v104, 2, v12\nbuffer_load_dword v105, v104, s[20:23], s69 offen sc0 sc1")
        a("s_barrier")
    P=296
    a(f"""
    s_lshl_b32 s36, s37, 4
    s_add_u32 s36, s36, {G}
    s_mov_b32 exec_lo, 0
    s_mov_b32 exec_hi, 0x80000000
    buffer_store_dwordx4 v[100:103], v108, s[20:23], s36 offen{SC}
    s_mov_b64 exec, -1
    s_mul_i32 s35, s29, {TBL[1]-TBL[0]}
    s_add_u32 s35, s35, {TBL[0]}
    s_mul_i32 s36, s29, {KCP[1]-KCP[0]}
    s_add_u32 s36, s36, {KCP[0]}
    v_lshlrev_b32 v11, 16, v110
    v_cmp_eq_u32 vcc, 0, v1
    v_mul_u32_u24 v4, {4*P}, v13
    v_add_u32 v4, v4, v12
    v_cndmask_b32 v11, 0, v11, vcc
    v_lshlrev_b32 v4, 2, v4
    v_add_u32 v4, s35, v4
    v_sub_u32 v5, 63, v1
    v_lshlrev_b32 v5, 2, v5
    v_add_u32 v5, s35, v5
    v_and_b32 v6, 1, v1
    v_xor_b32 v6, 1, v6
    v_lshl_add_u32 v6, v6, 2, v5
    v_add_u32 v9, s36, v7
    v_add_f32 v{D}, v{D}, v11
    v_mov_b32 v106, {L_FLAG}
    s_barrier
    s_waitcnt vmcnt(1)
    v_cmp_ne_u32 vcc, s66, v105
    s_mov_b32 s65, 0
    s_nop 1
    s_cbranch_vccnz KF_ULATE
    s_mov_b32 s65, 1
    """)
    def udma():
        a(f"s_lshl_b32 s34, s39, 12\ns_add_u32 s34, s34, {XT}\nv_lshlrev_b32 v14, 6, v1")
        for p in range(4): a(f"s_add_u32 s33, s34, {16*p}\ns_add_u32 m0, s71, {p*1536+512}\ns_nop 0\nbuffer_load_dwordx4 v14, s[20:23], s33 offen{SC} lds")
    udma()
    a("KF_ULATE:\ns_barrier\ns_barrier\ns_mov_b64 exec, 1\nds_write_b64 v106, v[108:109]\ns_mov_b64 exec, -1")
    AR=[0,1,2,3,256,258,512,768,1024,1280,1536,1792,2048]
    for r,av in enumerate(AR):
        a(f"ds_write_b32 v4, v{D+r} offset:{((av&7)*P+(av>>3)+1)*4}")
        if r==5: a("s_barrier")
    a("s_waitcnt lgkmcnt(0)\ns_barrier")
    stamp(a,4)
    def toff(rho,off): return ((off%8)*P+192-64*rho+(off//8)+1)*4
    rdm={}; reg=20
    rdm[3]={}
    for off in range(0,9): rdm[3][off]=reg; a(f"ds_read_b32 v{reg}, v5 offset:{toff(3,off)}"); reg+=1
    for rho in (0,1):
        rdm[rho]={8:reg,0:reg+1,'t':reg+2}
        a(f"ds_read_b32 v{reg}, v5 offset:{toff(rho,8)}\nds_read_b32 v{reg+1}, v5 offset:{toff(rho,0)}\nds_read_b32 v{reg+2}, v6 offset:{toff(rho,0)}"); reg+=3
    rdm[2]={8:reg,4:reg+1,0:reg+2}
    a(f"ds_read_b32 v{reg}, v5 offset:{toff(2,8)}\nds_read_b32 v{reg+1}, v5 offset:{toff(2,4)}\nds_read_b32 v{reg+2}, v5 offset:{toff(2,0)}"); reg+=3
    t=rdm[3]
    a(f"""
    v_lshrrev_b32 v84, 4, v1
    v_mul_u32_u24 v84, {CST}, v84
    v_and_b32 v85, 15, v1
    v_lshl_add_u32 v84, v85, 2, v84
    v_add_u32 v84, s36, v84
    ds_write_b32 v84, v108 offset:4096
    s_mov_b32 exec_hi, 0
    s_waitcnt lgkmcnt(10)
    v_mov_b32 v{t[7]}, v{t[8]}
    v_mov_b32 v{t[5]}, v{t[4]}
    v_mov_b32 v{t[3]}, v{t[4]}
    v_mov_b32 v{t[1]}, v{t[0]}
    s_mov_b64 exec, -1
    s_waitcnt lgkmcnt(1)
    """)
    el={}
    for rho in (0,1): r=rdm[rho]; el[rho]=[r[8],r[8],r[8],r['t'],r[0],r[0],r[0],r[0]]
    r=rdm[2]; el[2]=[r[8],r[8],r[4],r[4],r[4],r[0],r[0],r[0]]
    el[3]=[t[7-e] for e in range(8)]
    O=48
    for rho in range(4):
        e=el[rho]
        for i in range(4): a(f"v_cvt_pk_bf16_f32 v{O+rho*8+i}, v{e[2*i]}, v{e[2*i+1]}")
        a(f"ds_write_b128 v9, {vr(O+rho*8,4)} offset:{rho*1024}")
    for rho in range(4): a(f"ds_read_b64 {vr(O+rho*8+4,2)}, v9 offset:{rho*1024+16}")
    for rho in range(4):
        d=O+rho*8; o=112+12*(rho&1)
        a(f"s_waitcnt lgkmcnt({3-rho+3*rho})")
        for i in range(4): a(f"v_alignbit_b32 v{o+i}, v{d+i+1}, v{d+i}, 16")
        a(f"ds_write_b128 v9, {vr(o,4)} offset:{rho*1024+CST}")
        for i in range(4): a(f"v_mov_b32 v{o+4+i}, v{d+1+i}")
        a(f"ds_write_b128 v9, {vr(o+4,4)} offset:{rho*1024+2*CST}")
        for i in range(4): a(f"v_alignbit_b32 v{o+8+i}, v{d+i+2}, v{d+i+1}, 16")
        a(f"ds_write_b128 v9, {vr(o+8,4)} offset:{rho*1024+3*CST}")
    a("s_cmp_eq_u32 s65, 1\ns_cbranch_scc1 KF_CONV")
    poll(a,104,105,69)
    udma()

def conv(a):
    a(f"""
    s_and_b32 s29, s24, 1               ; ch
    s_bfe_u32 s28, s24, 0x10001         ; k
    s_mul_i32 s37, s29, {KCP[1]-KCP[0]}
    s_add_u32 s37, s37, {KCP[0]}
    v_lshlrev_b32 v7, 4, v1
    v_and_b32 v8, 31, v1
    v_lshrrev_b32 v9, 5, v1
    v_lshlrev_b32 v10, 3, v9
    v_sub_u32 v10, v10, v8
    v_add_u32 v10, 2063, v10
    v_and_b32 v11, 3, v10
    v_and_b32 v10, -4, v10
    v_lshlrev_b32 v10, 1, v10
    v_mul_u32_u24 v11, {CST}, v11
    v_add_u32 v10, v10, v11
    s_lshl_b32 s38, s28, 10
    s_sub_u32 s38, s37, s38
    s_sub_u32 s38, s38, {31*32}
    v_add_u32 v10, s38, v10
    v_subrev_u32 v11, 2048, v10
    v_mul_u32_u24 v12, 1536, v9
    v_lshl_add_u32 v12, v8, 4, v12
    s_mul_i32 s38, s29, 6144
    s_add_u32 s38, s38, {L_UA+512-15*16}
    s_lshl_b32 s39, s28, 8
    s_sub_u32 s38, s38, s39
    v_add_u32 v12, s38, v12
    """)
    C=[184,200]
    a("s_waitcnt vmcnt(0) lgkmcnt(0)\ns_barrier")
    stamp(a,5)
    F=96
    def rd(s):
        b=F+16*(s%3); o=(31-s)*4
        a(f"ds_read2_b64 {vr(b,4)}, v10 offset0:{o} offset1:{o+1}")
        a(f"ds_read_b128 {vr(b+8,4)}, v12 offset:{(3072 if s%2==0 else 0)+(15-(s>>1))*16}")
        a(f"ds_read_b128 {vr(b+12,4)}, v12 offset:{(3072 if s%2==0 else 0)+(15-(s>>1))*16+512}")
        a(f"ds_read2_b64 {vr(b+4,4)}, v11 offset0:{o} offset1:{o+1}")
    rd(0); rd(1)
    for s in range(32):
        b=F+16*(s%3)
        if s+2<32: rd(s+2)
        a(f"s_waitcnt lgkmcnt({4*min(2,31-s)})")
        z=lambda r: '0' if s==0 else vr(r,16)
        a(f"{MF} {vr(C[0],16)}, {vr(b,4)}, {vr(b+8,4)}, {z(C[0])}")
        a(f"{MF} {vr(C[1],16)}, {vr(b,4)}, {vr(b+12,4)}, {z(C[1])}")
        a(f"{MF} {vr(C[1],16)}, {vr(b+4,4)}, {vr(b+8,4)}, {vr(C[1],16)}")
    a(f"""
    s_mul_i32 s35, s29, {TBL[1]-TBL[0]}
    s_add_u32 s35, s35, {TBL[0]}
    s_lshl_b32 s36, s28, 12
    s_add_u32 s37, s35, s36
    s_xor_b32 s36, s36, 4096
    s_add_u32 s36, s35, s36
    v_add_u32 v2, s37, v7
    v_add_u32 v216, s36, v7
    s_lshl_b32 s70, s2, 1
    s_add_u32 s70, s70, s29
    s_lshl_b32 s70, s70, 12
    s_lshl_b32 s34, s28, 11
    s_add_u32 s70, s70, s34
    s_add_u32 s70, s70, {BT}
    v_lshlrev_b32 v217, 6, v8
    v_lshl_add_u32 v217, v9, 4, v217
    s_cmp_eq_u32 s28, 0
    s_cbranch_scc1 KF_CX0
    """)
    for g in range(4): a(f"ds_write_b128 v2, {vr(C[0]+4*g,4)} offset:{g*1024}")
    for r in range(16): a(f"v_mov_b32 v{C[0]+r}, v{C[1]+r}")
    a("s_branch KF_CX1\nKF_CX0:")
    for g in range(4): a(f"ds_write_b128 v2, {vr(C[1]+4*g,4)} offset:{g*1024}")
    a("KF_CX1:")
def conv_fin(a):
    C=[184,200]
    for g in range(4): a(f"ds_read_b128 {vr(C[1]+4*g,4)}, v216 offset:{g*1024}")
    a("s_waitcnt lgkmcnt(0)")
    for r in range(16): a(f"v_add_f32 v{C[0]+r}, v{C[0]+r}, v{C[1]+r}")
    for k in range(8): a(f"v_cvt_pk_bf16_f32 v{C[0]+k}, v{C[0]+2*k}, v{C[0]+2*k+1}")
    for p in range(2):
        a(f"v_permlane32_swap_b32 v{C[0]+4*p}, v{C[0]+4*p+2}\nv_permlane32_swap_b32 v{C[0]+4*p+1}, v{C[0]+4*p+3}")
        a(f"buffer_store_dwordx4 {vr(C[0]+4*p,4)}, v217, s[20:23], s70 offen offset:{32*p}{SC}")

def prologue(a):
    a("s_cmp_ge_u32 s2, 256\ns_cbranch_scc1 KF_END")
    stamp(a,0); stamp(a,1,True); dstamp(a,1)
    a("""
    s_load_dwordx4 s[4:7], s[0:1], 0
    s_load_dwordx4 s[8:11], s[0:1], 112
    s_load_dwordx8 s[40:47], s[0:1], 32
    s_load_dwordx8 s[48:55], s[0:1], 64
    s_load_dwordx2 s[56:57], s[0:1], 96
    s_getpc_b64 s[98:99]
    KF_PC:
    v_lshlrev_b32 v2, 7, v0
    v_min_u32 v2, KF_END-KF_PC, v2
    global_load_dword v224, v2, s[98:99]
    v_lshrrev_b32 v2, 6, v0
    v_and_b32 v1, 63, v0
    v_readfirstlane_b32 s24, v2
    s_and_b32 s30, s2, 7
    s_lshr_b32 s31, s2, 3
    s_lshr_b32 s25, s30, 1
    s_lshl_b32 s25, s25, 3
    s_and_b32 s32, s31, 7
    s_add_u32 s25, s25, s32
    s_and_b32 s26, s30, 1
    s_lshl_b32 s26, s26, 2
    s_lshr_b32 s32, s31, 3
    s_add_u32 s26, s26, s32
    s_waitcnt lgkmcnt(0)
    """)
    stamp(a,8)
    srd(a,12,4,0x200000); srd(a,16,6,512*1536*2); srd(a,20,10,WS_SIZE); srd(a,60,8,256)

def phaseA(a):
    prologue(a)
    a("""
    s_cmp_eq_u32 s24, 4
    s_cbranch_scc1 KF_LX
    s_cmp_eq_u32 s24, 5
    s_cbranch_scc1 KF_LW
    s_cmp_ge_u32 s24, 6
    s_cbranch_scc1 KF_HP
    """)
    compute(a)
    a("s_branch KF_ATT0\nKF_LX:"); loader(a,False)
    a("s_branch KF_CONV\nKF_LW:"); loader(a,True)
    a("s_branch KF_CONV\nKF_HP:"); helper(a)
    a("KF_CONV:"); conv(a)

def stage1():
    a=A()
    phaseA(a)
    a("s_waitcnt lgkmcnt(0)\ns_barrier")
    stamp(a,6)
    conv_fin(a)
    a("s_branch KF_FIN\nKF_ATT0:\ns_waitcnt vmcnt(0)")
    if 'F' not in OPT: stamp(a,6)
    set_flag(a,13,68)
    a("s_barrier")
    a("KF_FIN:")
    stamp_out(a,0,8)
    a("KF_END:\ns_endpgm")
    return a.l, dict(vgpr=232, sgpr=100, grid=256, block=512, lds=163840)
```

```python
from kf import *
vKa=2; vVa=[3,4]; vLin=7; vWo=5; vBo=6
vQ=[8,12]; vS=[16,32]; vP=48; vO=[56,72]; vK=[88,92]; vV=[96,104]; vNM=[112,128]; vT=176; vG=144; vFl=[145,146]; vFo=147
PRIO={6:3,1:2,3:1,5:0}
WOR=[0,32768,L_V,L_V+32*VST]
OR_=[16384,49152,L_V+16*VST,L_V+48*VST]
def sub(a, j, s, nm=False, ev=None):
    ev=ev or {}
    def run(k):
        for f in ev.get(k,[]): f()
    i=2*j+s
    sa=vS[s]; sb=vS[1-s]
    def ex(k): a(f"v_exp_f32 v{sa+k}, v{sa+k}")
    def cv(k): a(f"v_cvt_pk_bf16_f32 v{vP+k}, v{sa+2*k}, v{sa+2*k+1}")
    if i in PRIO and not nm: a(f"s_setprio {PRIO[i]}")
    ex(0); ex(1)
    pvb = vV[(j+1)&1] if s==0 else vV[j&1]
    a(f"{MF} {vr(vO[1-s],16)}, {vr(pvb+4,4)}, {vr(vP+4,4)}, {vr(vO[1-s],16)}")
    ex(2); ex(3); cv(0); ex(4)
    c = vr(vNM[1-s],16) if nm else "0"
    if s==0:
        a(f"{MF} {vr(sb,16)}, {vr(vK[j&1],4)}, {vr(vQ[1],4)}, {c}")
        a(f"ds_read_b128 {vr(vK[(j+1)&1],4)}, v{vKa} offset:{(j+1)*1024}")
        ex(5); cv(1)
        a(f"ds_read_b128 {vr(vV[(j+1)&1],4)}, v{vVa[0]} offset:{(j+1)*VST}")
        ex(6)
        a(f"ds_read_b128 {vr(vV[(j+1)&1]+4,4)}, v{vVa[1]} offset:{(j+1)*VST+512}")
        ex(7)
    else:
        a("s_waitcnt lgkmcnt(0)")
        a(f"{MF} {vr(sb,16)}, {vr(vK[(j+1)&1],4)}, {vr(vQ[0],4)}, {c}")
        ex(5); cv(1); ex(6); ex(7)
    cv(2); ex(8); cv(3); ex(9); ex(10)
    a(f"{MF} {vr(vO[s],16)}, {vr(vV[j&1],4)}, {vr(vP,4)}, {vr(vO[s],16)}")
    ex(11); cv(4); run('b')
    ex(12); ex(13); cv(5)
    ex(14); ex(15); cv(6); cv(7)
def kvdma(a):
    a(f"""
    s_mov_b32 m0, s30
    s_add_u32 s30, s30, 4096
    buffer_load_dwordx4 v{vLin}, s[20:23], s31 offen{SC} lds
    s_mov_b32 m0, s38
    s_add_u32 s38, s38, {4*VST}
    buffer_load_dwordx4 v{vLin}, s[20:23], s32 offen{SC} lds
    s_add_u32 s31, s31, 4096
    s_add_u32 s32, s32, 4096
    """)
def adv(a):
    a(f"v_add_u32 v{vKa}, 4096, v{vKa}\nv_add_u32 v{vVa[0]}, {4*VST}, v{vVa[0]}\nv_add_u32 v{vVa[1]}, {4*VST}, v{vVa[1]}")
def consts(a, tile0_expr):
    a(f"""
    v_lshrrev_b32 v{vT+3}, 3, v1
    {tile0_expr}
    v_add_u32 v{vT+3}, s53, v{vT+3}
    v_mul_u32_u24 v{vT+3}, {VST}, v{vT+3}
    v_and_b32 v{vT+6}, 7, v1
    v_lshl_add_u32 v{vT+3}, v{vT+6}, 2, v{vT+3}
    v_add_u32 v{vT+3}, {L_V+1024}, v{vT+3}
    v_cmp_gt_u32 vcc, 4, v{vT+6}
    v_mov_b32 v{vT+7}, 0x3f803f80
    v_cndmask_b32 v{vT+7}, 0, v{vT+7}, vcc
    ds_write_b32 v{vT+3}, v{vT+7}
    """)
def att_setup(a):
    a(f"""
    s_load_dwordx2 s[40:41], s[0:1], 16
    s_load_dwordx2 s[42:43], s[0:1], 104
    s_lshl_b32 s44, s25, 5
    s_lshl_b32 s45, s26, 2
    s_add_u32 s44, s44, s45
    s_add_u32 s44, s44, {FLG}
    s_lshl_b32 s45, s2, 2
    s_add_u32 s45, s45, {FLB}
    s_and_b32 s25, s2, 7
    s_lshl_b32 s25, s25, 2
    s_bfe_u32 s26, s2, 0x20003
    s_add_u32 s25, s25, s26
    s_lshr_b32 s26, s2, 5
    s_lshl_b32 s27, s25, 16
    s_and_b32 s36, s24, 3               ; qp
    s_lshr_b32 s37, s24, 2              ; khalf
    s_lshl_b32 s28, s26, 3
    s_lshl_b32 s29, s36, 1
    s_add_u32 s28, s28, s29
    v_lshlrev_b32 v{vLin}, 4, v1
    s_lshl_b32 s30, s37, 5
    s_add_u32 s30, s30, s36
    s_mul_i32 s38, s30, {VST}
    s_add_u32 s38, s38, {L_V}
    s_lshl_b32 s30, s30, 10
    s_add_u32 s31, s27, s30
    s_add_u32 s32, s31, {VF}
    s_add_u32 s31, s31, {KF}
    s_mov_b32 s46, 0
    v_and_b32 v{vT+1}, 31, v1
    v_lshrrev_b32 v{vT+2}, 5, v1
    s_lshl_b32 s53, s37, 15
    v_add_u32 v{vKa}, s53, v{vLin}
    s_mul_i32 s53, s37, {32*VST}
    s_add_u32 s53, s53, {L_V}
    v_lshlrev_b32 v{vT+3}, 8, v{vT+2}
    v_and_b32 v{vT+6}, 15, v1
    v_lshl_add_u32 v{vT+3}, v{vT+6}, 4, v{vT+3}
    v_and_b32 v{vT+6}, 27, v1
    v_cmp_eq_u32 vcc, 16, v{vT+6}
    v_mov_b32 v{vT+6}, 1040
    v_mov_b32 v{vT+7}, 1024
    v_cndmask_b32 v{vT+6}, v{vT+6}, v{vT+7}, vcc
    v_cmp_gt_u32 vcc, 16, v{vT+1}
    v_subrev_u32 v{vT+7}, 512, v{vT+6}
    v_lshrrev_b32 v{vWo}, 3, v1
    v_cndmask_b32 v{vVa[0]}, v{vT+6}, v{vT+3}, vcc
    v_cndmask_b32 v{vVa[1]}, v{vT+7}, v{vT+3}, vcc
    v_add_u32 v{vVa[0]}, s53, v{vVa[0]}
    v_add_u32 v{vVa[1]}, s53, v{vVa[1]}
    v_bfe_u32 v{vT+6}, v1, 4, 1
    v_lshlrev_b32 v{vT+6}, 2, v{vT+6}
    v_xor_b32 v{vT+6}, v{vT+6}, v1
    v_and_b32 v{vT+6}, 7, v{vT+6}
    v_lshlrev_b32 v{vBo}, 12, v{vWo}
    v_lshlrev_b32 v{vWo}, 10, v{vWo}
    v_lshl_add_u32 v{vWo}, v{vT+6}, 4, v{vWo}
    v_lshl_add_u32 v{vBo}, v{vT+6}, 4, v{vBo}
    s_lshl_b32 s53, s26, 7
    s_add_u32 s53, s53, {FLB}
    s_lshl_b32 s54, s25, 5
    s_add_u32 s54, s54, {FLG}
    v_lshlrev_b32 v{vT+6}, 2, v{vT+1}
    v_add_u32 v{vT+6}, s53, v{vT+6}
    v_and_b32 v{vT+7}, 7, v1
    v_lshlrev_b32 v{vT+7}, 2, v{vT+7}
    v_add_u32 v{vT+7}, s54, v{vT+7}
    v_cmp_gt_u32 vcc, 32, v1
    v_lshlrev_b32 v{vFo}, 2, v1
    s_lshl_b32 s47, s24, 10             ; wave*1024
    v_cndmask_b32 v{vFl[0]}, v{vT+7}, v{vT+6}, vcc
    s_lshl_b32 s48, s24, 13
    s_lshl_b32 s49, s26, 7
    s_add_u32 s48, s48, s49
    s_mov_b32 s49, 0                    ; zero
    s_waitcnt lgkmcnt(0)
    """)
    srd(a,12,40,512*512*2); srd(a,16,42,0x200000)
def init_main(a):
    for r in range(32): a(f"v_mov_b32 v{vO[0]+r}, 0")
    for r in range(4,8): a(f"v_mov_b32 v{vP+r}, 0")
    for r in range(4,8): a(f"v_mov_b32 v{vV[1]+r}, 0")
def first_reads(a,nm):
    a(f"ds_read_b128 {vr(vK[0],4)}, v{vKa}")
    a(f"ds_read_b128 {vr(vV[0],4)}, v{vVa[0]}\nds_read_b128 {vr(vV[0]+4,4)}, v{vVa[1]} offset:512")
    a(f"s_waitcnt lgkmcnt(2)\n{MF} {vr(vS[0],16)}, {vr(vK[0],4)}, {vr(vQ[0],4)}, {vr(vNM[0],16) if nm else 0}")
def wodma(a,n):
    a(f"s_add_u32 m0, s47, {WOR[n>>1]+(n&1)*8192}\ns_add_u32 s53, s48, {n*65536}\nbuffer_load_dwordx4 v{vWo}, s[12:15], s53 offen lds")
def bload(a):
    a(f"""
    s_lshl_b32 s53, s26, 18
    s_lshl_b32 s54, s25, 7
    s_add_u32 s53, s53, s54
    s_lshl_b32 s54, s24, 15
    s_add_u32 s53, s53, s54
    s_add_u32 s53, s53, {BT}
    s_add_u32 m0, s47, {L_Q}
    s_lshl_b32 s54, s25, 8
    buffer_load_dwordx4 v{vBo}, s[20:23], s53 offen{SC} lds
    s_and_b32 s55, s24, 1
    s_lshl_b32 s55, s55, 7
    s_add_u32 s54, s54, s55
    s_add_u32 s54, s54, {G}
    v_and_b32 v{vG}, 0x7c, v{vFo}
    buffer_load_dword v{vG}, v{vG}, s[20:23], s54 offen{SC}
    """)

def kf():
    a=A()
    phaseA(a)
    att_setup(a); init_main(a)
    a(f"s_add_u32 s30, s30, {4*4096}\ns_add_u32 s31, s31, {4*4096}\ns_add_u32 s32, s32, {4*4096}\ns_add_u32 s38, s38, {16*VST}")
    a("s_barrier")
    stamp(a,6)
    conv_fin(a)
    consts(a,"s_lshr_b32 s53, s36, 1\ns_lshl_b32 s53, s53, 5\ns_and_b32 s54, s36, 1\ns_lshl_b32 s54, s54, 3\ns_add_u32 s53, s53, s54\ns_add_u32 s53, s53, 16")
    a("s_branch KF_ATT1")
    a("KF_ATT0:")
    att_setup(a); init_main(a)
    consts(a,"s_lshr_b32 s53, s36, 1\ns_lshl_b32 s53, s53, 5\ns_and_b32 s54, s36, 1\ns_lshl_b32 s54, s54, 3\ns_add_u32 s53, s53, s54")
    a("s_waitcnt vmcnt(0)")
    stamp(a,6)
    set_flag(a,vT,68)
    a(f"s_lshr_b32 s53, s25, 1\ns_lshl_b32 s53, s53, 8\ns_add_u32 s53, s53, {FLQ}")
    poll(a,vFo,vT,53)
    stamp(a,7)
    a(f"""
    s_lshl_b32 s29, s28, 10
    s_add_u32 s29, s29, s27
    s_lshl_b32 s53, s36, 11
    s_add_u32 m0, s53, {L_Q}
    s_nop 0
    buffer_load_dwordx4 v{vLin}, s[20:23], s29 offen{SC} lds
    buffer_load_dwordx4 v{vLin}, s[20:23], s29 offen offset:1024{SC} lds
    """)
    for c in range(4):
        a(f"""
        s_add_u32 m0, s30, 32768
        s_add_u32 s53, s31, 32768
        buffer_load_dwordx4 v{vLin}, s[20:23], s53 offen{SC} lds
        s_add_u32 m0, s38, {32*VST}
        s_add_u32 s53, s32, 32768
        buffer_load_dwordx4 v{vLin}, s[20:23], s53 offen{SC} lds
        """)
        kvdma(a)
    a("s_waitcnt vmcnt(12) lgkmcnt(0)\ns_barrier")
    a("KF_ATT1:")
    stamp(a,3); stamp(a,8,True)
    a(f"""
    s_setprio 3
    s_lshl_b32 s53, s36, 11
    s_add_u32 s53, s53, {L_Q}
    v_add_u32 v{vT}, s53, v{vLin}
    ds_read_b128 {vr(vQ[0],4)}, v{vT}
    ds_read_b128 {vr(vQ[1],4)}, v{vT} offset:1024
    """)
    first_reads(a,False)
    a("s_mov_b32 s43, 0\ns_waitcnt lgkmcnt(0)\ns_nop 7\ns_nop 3\n.p2align 6\nKF_LC:")
    n0=len(a.l)
    def hook(k):
        def f():
            a(f"s_cmp_eq_u32 s43, 1\ns_cbranch_scc0 KF_H{k}a")
            kvdma(a)
            a(f"KF_H{k}a:\ns_cmp_eq_u32 s43, 4\ns_cbranch_scc0 KF_H{k}b")
            wodma(a,2*k); wodma(a,2*k+1)
            a(f"KF_H{k}b:")
            if k==0:
                a(f"s_cmp_eq_u32 s43, 5\ns_cbranch_scc0 KF_H{k}c\nbuffer_load_dword v{vFl[1]}, v{vFl[0]}, s[20:23], 0 offen sc0 sc1\nKF_H{k}c:")
            if k==1:
                a(f"s_cmp_eq_u32 s43, 6\ns_cbranch_scc0 KF_H{k}c\ns_waitcnt vmcnt(0)\nv_cmp_ne_u32 vcc, s66, v{vFl[1]}\ns_nop 1\ns_cbranch_vccz KF_H{k}d")
                poll(a,vFl[0],vFl[1],49)
                a(f"KF_H{k}d:")
                bload(a)
                a(f"KF_H{k}c:")
        return f
    for j in range(4):
        if j==3:
            a(f"""
            s_lshr_b32 s53, 9, s43
            s_bitcmp1_b32 s53, 0
            s_cbranch_scc0 KF_NB
            s_waitcnt vmcnt(0)
            s_barrier
            s_add_u32 s53, s43, s24
            s_cmp_eq_u32 s53, 0
            s_cbranch_scc0 KF_NB
            """)
            set_flag(a,vT,44,45)
            a("KF_NB:")
        for s in range(2): sub(a,j,s,ev=({'b':[hook(j)]} if s==0 else None))
    adv(a)
    a("s_add_u32 s43, s43, 1\ns_cmp_lt_u32 s43, 8\ns_cbranch_scc1 KF_LC")
    r=check_loop(a.l[n0:]); assert not r, r
    a("KF_DONE:")
    a(f"s_nop 1\n{MF} {vr(vO[1],16)}, {vr(vV[1]+4,4)}, {vr(vP+4,4)}, {vr(vO[1],16)}")
    stamp(a,5); stamp(a,9,True)
    a(f"""
    s_mul_i32 s53, s24, {XS}
    s_add_u32 s53, s53, {L_X}
    s_xor_b32 s54, s24, 4
    s_mul_i32 s54, s54, {XS}
    s_add_u32 s54, s54, {L_X}
    v_add_u32 v{vT}, s53, v{vLin}
    v_add_u32 v{vT+1}, s54, v{vLin}
    v_and_b32 v{vT+2}, 0x7c, v{vFo}
    v_add_u32 v{vT+3}, s54, v{vT+2}
    v_add_u32 v{vT+2}, s53, v{vT+2}
    s_cmp_eq_u32 s37, 0
    s_cbranch_scc1 KF_X0
    """)
    def xs(send,keep):
        a(f"ds_write_b128 v{vT}, {vr(send,4)}\nds_write_b128 v{vT}, {vr(send+4,4)} offset:1024\nds_write_b32 v{vT+2}, v{send+8} offset:2048")
        for r in range(9): a(f"v_mov_b32 v{vS[0]+r}, v{keep+r}")
    xs(vO[0],vO[1]); a("s_branch KF_X1\nKF_X0:\ns_nop 1"); xs(vO[1],vO[0])
    a(f"""
    KF_X1:
    s_add_u32 s33, s28, s37             ; q tile32
    s_lshl_b32 s50, s33, 7
    s_lshl_b32 s34, s25, 2
    s_add_u32 s50, s50, s34
    s_add_u32 s50, s50, {FLO}
    s_lshl_b32 s33, s33, 15
    s_lshl_b32 s34, s25, 10
    s_add_u32 s33, s33, s34
    s_add_u32 s33, s33, {OF}
    s_mov_b32 s56, {f32(2.0**120)}
    s_mov_b32 s57, {f32(2.0**100)}
    s_mov_b32 s58, {f32(2.0**-100)}
    s_waitcnt vmcnt(0) lgkmcnt(0)
    s_barrier
    ds_read_b128 {vr(vS[1],4)}, v{vT+1}
    ds_read_b128 {vr(vS[1]+4,4)}, v{vT+1} offset:1024
    ds_read_b32 v{vS[1]+8}, v{vT+3} offset:2048
    s_waitcnt lgkmcnt(0)
    """)
    o=vS[0]
    a(f"v_add_f32 v{o+8}, v{o+8}, v{vS[1]+8}\nv_rcp_f32 v{vT+4}, v{o+8}")
    for r in range(8): a(f"v_add_f32 v{o+r}, v{o+r}, v{vS[1]+r}")
    for r in range(8): a(f"v_mul_f32 v{vS[1]+r}, v{o+r}, v{vT+4}")
    for r in range(4): a(f"v_cvt_pk_bf16_f32 v{vP+r}, v{vS[1]+2*r}, v{vS[1]+2*r+1}")
    a(f"""
    buffer_store_dwordx4 {vr(vP,4)}, v{vLin}, s[20:23], s33 offen{SC}
    s_cmp_lg_u32 s46, 0
    s_cbranch_scc1 KF_REWO
    v_add_f32 v{vT}, abs(v{o}), abs(v{o+1})
    v_add_f32 v{vT+1}, abs(v{o+2}), abs(v{o+3})
    v_add_f32 v{vT+2}, abs(v{o+4}), abs(v{o+5})
    v_add_f32 v{vT+3}, abs(v{o+6}), abs(v{o+7})
    v_add_f32 v{vT}, v{vT}, v{vT+1}
    v_add_f32 v{vT+2}, v{vT+2}, v{vT+3}
    v_add_f32 v{vT}, v{vT}, v{vT+2}
    v_cmp_gt_f32 s[52:53], s56, v{vT}
    v_cmp_gt_f32 s[54:55], s57, v{o+8}
    v_cmp_lt_f32 s[64:65], s58, v{o+8}
    v_mov_b32 v{vT+1}, {L_FLAG}
    v_mov_b32 v{vT+2}, 1
    s_and_b64 s[52:53], s[52:53], s[54:55]
    s_and_b64 s[52:53], s[52:53], s[64:65]
    s_cmp_eq_u64 s[52:53], -1
    s_cbranch_scc1 KF_OK
    ds_write_b32 v{vT+1}, v{vT+2}
    KF_OK:
    s_waitcnt lgkmcnt(0)
    s_barrier
    ds_read_b32 v{vT+2}, v{vT+1}
    s_waitcnt lgkmcnt(0)
    v_readfirstlane_b32 s53, v{vT+2}
    s_cmp_eq_u32 s53, 0
    s_cbranch_scc0 KF_FALL
    KF_PC3:
    """)
    a(f"""
    s_and_b32 s36, s24, 1               ; th
    s_bfe_u32 s37, s24, 0x10001         ; dh
    s_lshl_b32 s51, s25, 8
    s_add_u32 s51, s51, {FLO}
    s_waitcnt vmcnt(0)
    """)
    set_flag(a,vT,50)
    stamp(a,2)
    a(f"""
    s_lshl_b32 s52, s25, 16
    s_add_u32 s52, s52, {OF}
    s_lshr_b32 s53, s24, 2
    s_lshl_b32 s54, s53, 15
    s_add_u32 s52, s52, s54
    s_and_b32 s54, s24, 3
    s_lshl_b32 s54, s54, 10
    s_add_u32 s52, s52, s54
    s_lshl_b32 s53, s53, 13
    s_add_u32 s53, s53, s54
    v_lshrrev_b32 v10, 5, v1
    v_bfe_u32 v11, v1, 2, 2
    v_lshl_add_u32 v12, v10, 2, v11
    v_lshlrev_b32 v12, 7, v12
    v_lshrrev_b32 v13, 1, v11
    v_xor_b32 v14, s37, v13
    v_lshl_add_u32 v14, v14, 6, v12
    v_bfe_u32 v15, v1, 4, 1
    v_lshlrev_b32 v15, 5, v15
    v_and_b32 v16, 3, v1
    v_lshl_add_u32 v15, v16, 3, v15
    v_add_u32 v14, v14, v15
    v_xor_b32 v17, s36, v13
    v_lshl_add_u32 v17, v17, 6, v12
    v_add_u32 v17, v17, v15
    s_lshl_b32 s54, s37, 12
    s_add_u32 s54, s54, {L_Q}
    v_add_u32 v17, s54, v17
    s_lshl_b32 s54, s36, 13
    v_add_u32 v9, s54, v{vLin}
    s_lshr_b32 s54, s24, 2
    s_mul_i32 s55, s54, {L_V}
    v_add_u32 v14, s55, v14
    s_mul_i32 s55, s54, {OR_[2]-OR_[0]}
    s_add_u32 s55, s55, {OR_[0]}
    v_add_u32 v9, s55, v9
    s_mul_i32 s55, s54, {32*VST-32768}
    s_add_u32 s55, s55, 32768
    v_add_u32 v18, s55, v14
    v_add_u32 v19, s55, v9
    """)
    poll(a,vFo,vT,51)
    stamp(a,4)
    for n in range(8):
        a(f"""
        s_add_u32 s54, s26, {n}
        s_and_b32 s54, s54, 7
        s_lshl_b32 s55, s54, 12
        s_add_u32 s56, s52, s55
        s_bfe_u32 s57, s54, 0x10002
        s_mul_i32 s58, s57, {OR_[2]-OR_[0]}
        s_mul_i32 s57, s57, {32*VST-32768}
        s_add_u32 s57, s57, 32768
        s_bfe_u32 s59, s54, 0x10001
        s_mul_i32 s57, s57, s59
        s_add_u32 s58, s58, s57
        s_and_b32 s55, s55, 4096
        s_add_u32 s58, s58, s55
        s_add_u32 s58, s58, s53
        s_add_u32 m0, s58, {OR_[0]}
        s_nop 0
        buffer_load_dwordx4 v{vLin}, s[20:23], s56 offen{SC} lds
        """)
    ACC=32; FR=48
    for h in range(16):
        wa = 14 if h<8 else 18
        a(f"ds_read_b64_tr_b16 {vr(FR+4*h,2)}, v{wa} offset:{(h&7)*2048}\nds_read_b64_tr_b16 {vr(FR+4*h+2,2)}, v{wa} offset:{(h&7)*2048+1024}")
    for g in range(4): a(f"ds_read_b64_tr_b16 {vr(20+2*g,2)}, v17 offset:{g*1024}")
    a(f"""
    v_sub_f32 v28, 1.0, v{vG}
    v_cvt_pk_bf16_f32 v28, v28, v28
    s_mov_b32 s40, 0xffff0000
    v_and_b32 v28, s40, v28
    v_and_b32 v29, 31, v1
    v_lshlrev_b32 v29, 10, v29
    v_lshl_add_u32 v29, v10, 4, v29
    s_lshl_b32 s41, s25, 16
    s_lshl_b32 s42, s36, 15
    s_add_u32 s41, s41, s42
    s_lshl_b32 s42, s37, 6
    s_add_u32 s41, s41, s42
    s_lshl_b32 s42, s26, 7
    s_add_u32 s41, s41, s42
    s_lshr_b32 s42, s24, 2
    s_lshl_b32 s42, s42, 5
    s_add_u32 s41, s41, s42
    s_mul_i32 s53, s24, {XS}
    s_add_u32 s53, s53, {L_X}
    s_xor_b32 s54, s24, 4
    s_mul_i32 s54, s54, {XS}
    s_add_u32 s54, s54, {L_X}
    v_add_u32 v30, s53, v{vLin}
    v_add_u32 v31, s54, v{vLin}
    s_waitcnt vmcnt(0) lgkmcnt(0)
    s_barrier
    """)
    stamp(a,7)
    OFR=112
    for h in range(8): a(f"ds_read_b128 {vr(OFR+4*h,4)}, v9 offset:{h*1024}")
    for h in range(16):
        a(f"s_waitcnt lgkmcnt({7 if h<8 else 15-h})")
        a(f"{MF} {vr(ACC,16)}, {vr(FR+4*h,4)}, {vr(OFR+4*(h&7),4)}, {'0' if h==0 else vr(ACC,16)}")
        if h<8: a(f"ds_read_b128 {vr(OFR+4*h,4)}, v19 offset:{h*1024}")
    a("s_cmp_lt_u32 s24, 4\ns_cbranch_scc1 KF_R0")
    a(f"ds_write_b128 v30, {vr(ACC,4)}\nds_write_b128 v30, {vr(ACC+4,4)} offset:1024")
    for r in range(8): a(f"v_mov_b32 v{ACC+r}, v{ACC+8+r}")
    for r in range(4): a(f"v_mov_b32 v{20+r}, v{24+r}")
    a("s_branch KF_R1\nKF_R0:\ns_nop 7\ns_nop 3")
    a(f"ds_write_b128 v30, {vr(ACC+8,4)}\nds_write_b128 v30, {vr(ACC+12,4)} offset:1024")
    a(f"KF_R1:\ns_waitcnt lgkmcnt(0)\ns_barrier\nds_read_b128 {vr(FR,4)}, v31\nds_read_b128 {vr(FR+4,4)}, v31 offset:1024")
    for k in range(4): a(f"v_lshlrev_b32 v{64+2*k}, 16, v{20+k}\nv_and_b32 v{65+2*k}, s40, v{20+k}")
    for r in range(8): a(f"v_mul_f32 v{64+r}, v28, v{64+r}")
    a("s_waitcnt lgkmcnt(0)")
    for r in range(8): a(f"v_add_f32 v{ACC+r}, v{ACC+r}, v{FR+r}")
    for r in range(8): a(f"v_fma_f32 v{64+r}, v{vG}, v{ACC+r}, v{64+r}")
    for k in range(4): a(f"v_cvt_pk_bf16_f32 v{72+k}, v{64+2*k}, v{65+2*k}")
    a(f"""
    v_permlane32_swap_b32 v72, v74
    v_permlane32_swap_b32 v73, v75
    buffer_store_dwordx4 v[72:75], v29, s[16:19], s41 offen
    """)
    stamp_out(a,0,8)
    a("s_endpgm")
    a(f"""
    KF_FALL:
    s_mov_b32 s46, 1
    s_sub_u32 s30, s30, {8*4096}
    s_sub_u32 s31, s31, {8*4096}
    s_sub_u32 s32, s32, {8*4096}
    s_sub_u32 s38, s38, {32*VST}
    """)
    for c in range(8): kvdma(a)
    consts(a,"s_lshl_b32 s53, s24, 3")
    a(f"""
    s_waitcnt vmcnt(0) lgkmcnt(0)
    s_barrier
    v_mov_b32 v{vT}, 0xff800000
    v_mov_b32 v{vT+1}, 0xff800000
    v_mov_b32 v{vT+2}, v{vLin}
    s_mov_b32 s43, 64
    KF_MAXLOOP:
    ds_read_b128 {vr(vK[0],4)}, v{vT+2}
    v_add_u32 v{vT+2}, 1024, v{vT+2}
    s_waitcnt lgkmcnt(0)
    {MF} {vr(vS[0],16)}, {vr(vK[0],4)}, {vr(vQ[0],4)}, 0
    {MF} {vr(vS[1],16)}, {vr(vK[0],4)}, {vr(vQ[1],4)}, 0
    """)
    for s in range(2):
        for k in range(8): a(f"v_max3_f32 v{vT+s}, v{vT+s}, v{vS[s]+2*k}, v{vS[s]+2*k+1}")
    a(f"""
    s_sub_u32 s43, s43, 1
    s_cmp_lg_u32 s43, 0
    s_cbranch_scc1 KF_MAXLOOP
    v_mov_b32 v{vT+2}, v{vT}
    v_mov_b32 v{vT+3}, v{vT+1}
    v_permlane32_swap_b32 v{vT}, v{vT+2}
    v_permlane32_swap_b32 v{vT+1}, v{vT+3}
    v_max_f32 v{vT}, v{vT}, v{vT+2}
    v_max_f32 v{vT+1}, v{vT+1}, v{vT+3}
    v_subrev_u32 v{vKa}, {8*4096}, v{vKa}
    v_subrev_u32 v{vVa[0]}, {32*VST}, v{vVa[0]}
    v_subrev_u32 v{vVa[1]}, {32*VST}, v{vVa[1]}
    """)
    for s in range(2):
        for r in range(16): a(f"v_sub_f32 v{vNM[s]+r}, 0, v{vT+s}")
    init_main(a)
    first_reads(a,True)
    a("s_mov_b32 s43, 8\ns_waitcnt lgkmcnt(0)\ns_nop 7\ns_nop 3\nKF_LF:")
    n0=len(a.l)
    for j in range(4):
        for s in range(2): sub(a,j,s,nm=True)
    adv(a)
    a("s_sub_u32 s43, s43, 1\ns_cmp_lg_u32 s43, 0\ns_cbranch_scc1 KF_LF")
    r=check_loop(a.l[n0:]); assert not r, r
    a("s_branch KF_DONE\nKF_REWO:")
    for n in range(8): wodma(a,n)
    a("s_waitcnt vmcnt(0)\ns_barrier\ns_branch KF_PC3")
    a("KF_END:\ns_endpgm")
    return a.l, dict(vgpr=232, sgpr=100, grid=256, block=512, lds=163840)
```

```python
import sys
from asmlib import *
import kf2
NAME="gated_mix__softmax_full_mha__ssm_conv_s4__prompt"
def build1(l,m,outfn):
    ref=open(f"cdna_kernels/{NAME}.s.ref").read().split('\n')
    hdr=[x for x in ref if x.startswith(';') and '@launch' not in x]
    n=NAME+"_kernel"
    out=hdr+[f"; @launch grid=({m['grid']},1,1) block=({m['block']},1,1) lds={m['lds']}",'.amdgcn_target "amdgcn-amd-amdhsa--gfx950"','.text']
    rep=[]; pl=pad(l,rep)
    print("instrs",len(pl),"pads",len(rep),file=sys.stderr)
    if '-v' in sys.argv:
        for r in rep: print("   pad",r,file=sys.stderr)
    out+=[f".globl {n}",".p2align 8",f".type {n},@function",f"{n}:"]+pl
    v=m['vgpr']
    out+=['.section .rodata,"a"',".p2align 6",f".amdhsa_kernel {n}",f"  .amdhsa_next_free_vgpr {v}",f"  .amdhsa_next_free_sgpr {m['sgpr']}",
          f"  .amdhsa_accum_offset {(v+3)//4*4}","  .amdhsa_group_segment_fixed_size 0","  .amdhsa_kernarg_size 128",
          "  .amdhsa_user_sgpr_count 2","  .amdhsa_user_sgpr_kernarg_segment_ptr 1","  .amdhsa_system_sgpr_workgroup_id_x 1",".end_amdhsa_kernel"]
    open(outfn,'w').write('\n'.join(out)+'\n')
l,m=kf2.kf()
build1(l,m,sys.argv[1] if len(sys.argv)>1 and sys.argv[1].endswith('.s') else f"cdna_kernels/{NAME}.s")
```

```python
import re
TRANS = ("v_exp_f32","v_log_f32","v_rcp_f32","v_rsq_f32","v_sqrt_f32","v_sin_f32","v_cos_f32","v_exp_f16","v_rcp_iflag_f32")
def regs_of(tok):
    tok = tok.strip()
    tok = re.sub(r'^-', '', tok)
    m = re.match(r'^(?:abs|neg)\((.*)\)$', tok)
    if m: tok = m.group(1)
    m = re.match(r'^\|(.*)\|$', tok)
    if m: tok = m.group(1)
    m = re.match(r'^([vsa])\[(\d+):(\d+)\]$', tok)
    if m: return [(m.group(1), i) for i in range(int(m.group(2)), int(m.group(3))+1)]
    m = re.match(r'^([vsa])(\d+)$', tok)
    if m: return [(m.group(1), int(m.group(2)))]
    if tok in ('vcc','vcc_lo','vcc_hi'): return [('vcc',0)]
    if tok in ('exec','exec_lo','exec_hi'): return [('exec',0)]
    if tok == 'm0': return [('m0',0)]
    return []
def split_ops(s):
    out=[]; d=0; cur=''
    for ch in s:
        if ch in '[(': d+=1
        if ch in '])': d-=1
        if ch==',' and d==0: out.append(cur.strip()); cur=''
        else: cur+=ch
    if cur.strip(): out.append(cur.strip())
    return out
class Ins:
    def __init__(self, text):
        self.text = text
        t = text.split(';')[0].strip()
        self.label = t.endswith(':')
        self.op = ''; self.dst=[]; self.src=[]; self.kind='other'; self.srcC=[]; self.passes=0
        self.nops = 1
        if not t or self.label or t.startswith('.'):
            self.kind='none'; self.nops=0; return
        p = t.split(None,1); self.op = op = p[0]
        rest = p[1] if len(p)>1 else ''
        ops = split_ops(rest)
        if ops:
            last = ops[-1].split()
            mods = last[1:]; ops[-1] = last[0] if last else ''
        else: mods=[]
        self.mods = ' '.join(mods)
        R = [regs_of(o) for o in ops]
        flat = lambda L: [r for x in L for r in x]
        if op == 's_nop': self.kind='nop'; self.nops=int(ops[0],0)+1; return
        if op.startswith('v_mfma') or op.startswith('v_smfmac'):
            self.kind='mfma'; self.dst=R[0]; self.src=R[1]+R[2]; self.srcC=R[3]
            self.passes = 8 if '32x32x16' in op else 4 if '16x16x32' in op else 16
            return
        if op.startswith('v_'):
            self.kind = 'trans' if op.replace('_e32','').replace('_e64','') in TRANS else 'valu'
            if op.startswith('v_cmp'):
                self.dst=R[0]; self.src=flat(R[1:])
            elif op.startswith('v_permlane') and 'swap' in op:
                self.dst=R[0]+R[1]; self.src=R[0]+R[1]
            elif op in ('v_add_co_u32','v_sub_co_u32','v_addc_co_u32','v_subb_co_u32','v_add_co_u32_e32','v_addc_co_u32_e32'):
                self.dst=R[0]+R[1]; self.src=flat(R[2:])
            else:
                self.dst=R[0]; self.src=flat(R[1:])
                if op.startswith('v_fmac') or op.startswith('v_dot2c') or 'dpp' in op or 'row_' in self.mods or 'UNUSED_PRESERVE' in self.mods: self.src=self.src+R[0]
            self.dpp = ('dpp' in op) or ('row_' in self.mods) or ('quad_perm' in self.mods)
            return
        if op.startswith('ds_'):
            self.kind='ds'
            if op.startswith('ds_read') or op.startswith('ds_bpermute') or op.startswith('ds_swizzle') or op.startswith('ds_permute'):
                self.dst=R[0]; self.src=flat(R[1:])
            else: self.src=flat(R)
            return
        if op.startswith('buffer_') or op.startswith('global_'):
            self.kind='vmem'
            self.lds = (' lds' in ' '+self.mods) or ('_lds_' in op)
            if 'load' in op and not self.lds:
                self.dst=R[0]; self.src=flat(R[1:])
            else: self.src=flat(R)
            self.wide_store = ('store' in op) and ('x4' in op or 'x3' in op)
            if self.wide_store:
                self.sdata = R[0] if op.startswith('buffer_') else R[1]
            return
        if op.startswith('s_'):
            self.kind='salu'
            if op.startswith('s_cmp') or op.startswith('s_cbranch') or op in ('s_branch','s_waitcnt','s_barrier','s_endpgm','s_setprio','s_sleep'):
                self.src=flat(R)
            else:
                self.dst=R[0] if R else []; self.src=flat(R[1:])
                if 'saveexec' in op: self.dst=self.dst+[('exec',0)]
            return
def need(prev, cur):
    n=0
    ov = lambda a,b: bool(set(a)&set(b))
    pv = prev.kind in ('valu','trans'); cv = cur.kind in ('valu','trans')
    pdv = [r for r in prev.dst if r[0] in 'va']
    pds = [r for r in prev.dst if r[0] in ('s','vcc')]
    if pv:
        if cur.kind=='mfma' and ov(pdv, cur.src+cur.srcC): n=max(n,2)
        if prev.kind=='trans' and cur.kind=='valu' and ov(pdv,cur.src): n=max(n,1)
        if cv and ov(pds,cur.src): n=max(n,4 if 'lane' in cur.op else 2)
        if cv and cur.op.startswith('v_cndmask') and ('vcc',0) in pds: n=max(n,2)
        if cur.kind=='vmem' and ov(pds,cur.src): n=max(n,5)
        if cur.kind=='salu' and ov(pds,cur.src): n=max(n,1)
        if cv and getattr(cur,'dpp',False) and ov(pdv,cur.src): n=max(n,2)
        if cv and cur.op.startswith('v_permlane') and ov(pdv,cur.src): n=max(n,2)
        if cv and (cur.op.startswith('v_readlane') or cur.op.startswith('v_readfirstlane')) and ov(pdv,cur.src): n=max(n,1)
        if ('op_sel' in prev.mods and not prev.op.startswith('v_pk')) or 'sdwa' in prev.op:
            if cv and ov(pdv,cur.src+cur.dst): n=max(n,1)
    if prev.kind=='mfma':
        big = {4:8,8:12,16:20}[prev.passes]; part={4:6,8:10,16:18}[prev.passes]; war={4:3,8:7,16:15}[prev.passes]
        if cur.kind=='mfma':
            if ov(prev.dst,cur.src): n=max(n,big)
            if ov(prev.dst,cur.srcC) and not (prev.dst==cur.srcC and prev.passes==cur.passes): n=max(n,part)
            if ov(prev.dst,cur.dst) and not (prev.dst==cur.srcC): n=max(n,part)
        elif cur.kind in ('valu','trans','ds','vmem'):
            if ov(prev.dst,cur.src+cur.dst): n=max(n,big)
            if ov(prev.srcC,cur.dst) : n=max(n,war)
    if prev.kind=='salu' and ('m0',0) in prev.dst and cur.kind=='vmem' and cur.lds: n=max(n,1)
    if prev.kind=='vmem' and getattr(prev,'wide_store',False) and ov(prev.sdata,cur.dst): n=max(n,2)
    return n
def pad(lines, report=None):
    out=[]; hist=[]
    for ln in lines:
        cur=Ins(ln)
        if cur.kind=='none': out.append(ln); continue
        req=0; dist=0
        for p in reversed(hist):
            r=need(p,cur)-dist
            if r>req: req=r
            dist+=p.nops
            if dist>=20: break
        if req>0:
            if report is not None: report.append((req,ln.strip()))
            k=req
            while k>0:
                c=min(k,16); nl=f"    s_nop {c-1}"; out.append(nl); hist.append(Ins(nl)); k-=c
        out.append(ln); hist.append(cur)
        if len(hist)>40: hist=hist[-30:]
    return out
def check_loop(body):
    rep=[]; pad(body+body, rep); return rep
class A:
    def __init__(self): self.l=[]
    def __call__(self, s):
        for x in s.strip('\n').split('\n'):
            x=x.strip()
            if not x: continue
            self.l.append(x if x.endswith(':') or x.startswith('.') else '    '+x)
    def ext(self, lines): self.l.extend(lines)
def vr(b,n=1): return f"v{b}" if n==1 else f"v[{b}:{b+n-1}]"
def sr(b,n=1): return f"s{b}" if n==1 else f"s[{b}:{b+n-1}]"

import os
STAMP = os.environ.get("STAMP","")!=""
DBGOFF=0x1200000
def stamp(a,k,real=False):
    if not STAMP: return
    a(f"s_waitcnt lgkmcnt(0)\ns_mem{'real' if real else ''}time s[{72+2*k}:{73+2*k}]\ns_waitcnt lgkmcnt(0)")
def stamp_out(a, kid, nw, srd=20, wave=24, n=12):
    if not STAMP: return
    stamp(a,n-2); stamp(a,n-1,real=True)
    a(f"""
    s_mov_b64 exec, 1
    s_mul_i32 s70, s2, {nw}
    s_add_u32 s70, s70, s{wave}
    s_lshl_b32 s70, s70, 7
    s_add_u32 s70, s70, {DBGOFF+kid*0x100000}
    s_getreg_b32 s71, hwreg(HW_REG_HW_ID)
    v_mov_b32 v2, 0
    """)
    for k in range(0,2*n,4):
        for j in range(4): a(f"v_mov_b32 v{4+j}, s{72+k+j}")
        a(f"buffer_store_dwordx4 v[4:7], v2, s[{srd}:{srd+3}], s70 offen offset:{k*4}")
        a("s_nop 1")
    a(f"s_getreg_b32 s72, hwreg(HW_REG_XCC_ID)")
    a(f"v_mov_b32 v4, s71\nv_mov_b32 v5, s72\nbuffer_store_dwordx2 v[4:5], v2, s[{srd}:{srd+3}], s70 offen offset:{8*n}")

DIAG = os.environ.get("DIAG","")!=""
def dstamp(a,k):
    if not DIAG: return
    a(f"s_waitcnt lgkmcnt(0)\ns_memrealtime s[96:97]\ns_waitcnt lgkmcnt(0)\ns_mov_b32 s{72+k}, s96")
def dout(a,ks):
    if not DIAG: return
    a("s_mov_b64 exec, 1")
    for k in ks:
        a(f"s_sub_u32 s96, s{72+k}, s66\ns_add_u32 s96, s96, 1000\nv_mov_b32 v2, {4*k}\nv_mov_b32 v3, s96\nbuffer_atomic_umax v3, v2, s[60:63], 0 offen")
        a(f"s_sub_u32 s96, 0x10000, s96\nv_mov_b32 v4, {4*k+32}\nv_mov_b32 v5, s96\nbuffer_atomic_umax v5, v4, s[60:63], 0 offen")
```

```python
from kf import *
vKa=2; vVa=[3,4]; vLin=7; vWo=5; vBo=6
vQ=[8,12]; vS=[16,32]; vP=48; vO=[56,72]; vK=[88,92]; vV=[96,104]; vNM=[112,128]; vT=176; vG=144; vFl=[145,146]; vFo=147
PRIO={6:3,1:2,3:1,5:0}
WOR=[0,32768,L_V,L_V+32*VST]
OR_=[16384,49152,L_V+16*VST,L_V+48*VST]
def sub(a, j, s, nm=False, ev=None):
    ev=ev or {}
    def run(k):
        for f in ev.get(k,[]): f()
    i=2*j+s
    sa=vS[s]; sb=vS[1-s]
    def ex(k): a(f"v_exp_f32 v{sa+k}, v{sa+k}")
    def cv(k): a(f"v_cvt_pk_bf16_f32 v{vP+k}, v{sa+2*k}, v{sa+2*k+1}")
    if i in PRIO and not nm: a(f"s_setprio {PRIO[i]}")
    ex(0); ex(1)
    pvb = vV[(j+1)&1] if s==0 else vV[j&1]
    a(f"{MF} {vr(vO[1-s],16)}, {vr(pvb+4,4)}, {vr(vP+4,4)}, {vr(vO[1-s],16)}")
    ex(2); ex(3); cv(0); ex(4)
    c = vr(vNM[1-s],16) if nm else "0"
    if s==0:
        a(f"{MF} {vr(sb,16)}, {vr(vK[j&1],4)}, {vr(vQ[1],4)}, {c}")
        a(f"ds_read_b128 {vr(vK[(j+1)&1],4)}, v{vKa} offset:{(j+1)*1024}")
        ex(5); cv(1)
        a(f"ds_read_b128 {vr(vV[(j+1)&1],4)}, v{vVa[0]} offset:{(j+1)*VST}")
        ex(6)
        a(f"ds_read_b128 {vr(vV[(j+1)&1]+4,4)}, v{vVa[1]} offset:{(j+1)*VST+512}")
        ex(7)
    else:
        a("s_waitcnt lgkmcnt(0)")
        a(f"{MF} {vr(sb,16)}, {vr(vK[(j+1)&1],4)}, {vr(vQ[0],4)}, {c}")
        ex(5); cv(1); ex(6); ex(7)
    cv(2); ex(8); cv(3); ex(9); ex(10)
    a(f"{MF} {vr(vO[s],16)}, {vr(vV[j&1],4)}, {vr(vP,4)}, {vr(vO[s],16)}")
    ex(11); cv(4); run('b')
    ex(12); ex(13); cv(5)
    ex(14); ex(15); cv(6); cv(7)
def kvdma(a):
    a(f"""
    s_mov_b32 m0, s30
    s_add_u32 s30, s30, 4096
    buffer_load_dwordx4 v{vLin}, s[20:23], s31 offen{SC} lds
    s_mov_b32 m0, s38
    s_add_u32 s38, s38, {4*VST}
    buffer_load_dwordx4 v{vLin}, s[20:23], s32 offen{SC} lds
    s_add_u32 s31, s31, 4096
    s_add_u32 s32, s32, 4096
    """)
def adv(a):
    a(f"v_add_u32 v{vKa}, 4096, v{vKa}\nv_add_u32 v{vVa[0]}, {4*VST}, v{vVa[0]}\nv_add_u32 v{vVa[1]}, {4*VST}, v{vVa[1]}")
def consts(a, tile0_expr):
    a(f"""
    v_lshrrev_b32 v{vT+3}, 3, v1
    {tile0_expr}
    v_add_u32 v{vT+3}, s53, v{vT+3}
    v_mul_u32_u24 v{vT+3}, {VST}, v{vT+3}
    v_and_b32 v{vT+6}, 7, v1
    v_lshl_add_u32 v{vT+3}, v{vT+6}, 2, v{vT+3}
    v_add_u32 v{vT+3}, {L_V+1024}, v{vT+3}
    v_cmp_gt_u32 vcc, 4, v{vT+6}
    v_mov_b32 v{vT+7}, 0x3f803f80
    v_cndmask_b32 v{vT+7}, 0, v{vT+7}, vcc
    ds_write_b32 v{vT+3}, v{vT+7}
    """)
def att_setup(a):
    a(f"""
    s_load_dwordx2 s[40:41], s[0:1], 16
    s_load_dwordx2 s[42:43], s[0:1], 104
    s_lshl_b32 s44, s25, 5
    s_lshl_b32 s45, s26, 2
    s_add_u32 s44, s44, s45
    s_add_u32 s44, s44, {FLG}
    s_lshl_b32 s45, s2, 2
    s_add_u32 s45, s45, {FLB}
    s_and_b32 s25, s2, 7
    s_lshl_b32 s25, s25, 2
    s_bfe_u32 s26, s2, 0x20003
    s_add_u32 s25, s25, s26
    s_lshr_b32 s26, s2, 5
    s_lshl_b32 s27, s25, 16
    s_and_b32 s36, s24, 3               ; qp
    s_lshr_b32 s37, s24, 2              ; khalf
    s_lshl_b32 s28, s26, 3
    s_lshl_b32 s29, s36, 1
    s_add_u32 s28, s28, s29
    v_lshlrev_b32 v{vLin}, 4, v1
    s_lshl_b32 s30, s37, 5
    s_add_u32 s30, s30, s36
    s_mul_i32 s38, s30, {VST}
    s_add_u32 s38, s38, {L_V}
    s_lshl_b32 s30, s30, 10
    s_add_u32 s31, s27, s30
    s_add_u32 s32, s31, {VF}
    s_add_u32 s31, s31, {KF}
    s_mov_b32 s46, 0
    v_and_b32 v{vT+1}, 31, v1
    v_lshrrev_b32 v{vT+2}, 5, v1
    s_lshl_b32 s53, s37, 15
    v_add_u32 v{vKa}, s53, v{vLin}
    s_mul_i32 s53, s37, {32*VST}
    s_add_u32 s53, s53, {L_V}
    v_lshlrev_b32 v{vT+3}, 8, v{vT+2}
    v_and_b32 v{vT+6}, 15, v1
    v_lshl_add_u32 v{vT+3}, v{vT+6}, 4, v{vT+3}
    v_and_b32 v{vT+6}, 27, v1
    v_cmp_eq_u32 vcc, 16, v{vT+6}
    v_mov_b32 v{vT+6}, 1040
    v_mov_b32 v{vT+7}, 1024
    v_cndmask_b32 v{vT+6}, v{vT+6}, v{vT+7}, vcc
    v_cmp_gt_u32 vcc, 16, v{vT+1}
    v_subrev_u32 v{vT+7}, 512, v{vT+6}
    v_lshrrev_b32 v{vWo}, 3, v1
    v_cndmask_b32 v{vVa[0]}, v{vT+6}, v{vT+3}, vcc
    v_cndmask_b32 v{vVa[1]}, v{vT+7}, v{vT+3}, vcc
    v_add_u32 v{vVa[0]}, s53, v{vVa[0]}
    v_add_u32 v{vVa[1]}, s53, v{vVa[1]}
    v_bfe_u32 v{vT+6}, v1, 4, 1
    v_lshlrev_b32 v{vT+6}, 2, v{vT+6}
    v_xor_b32 v{vT+6}, v{vT+6}, v1
    v_and_b32 v{vT+6}, 7, v{vT+6}
    v_lshlrev_b32 v{vBo}, 12, v{vWo}
    v_lshlrev_b32 v{vWo}, 10, v{vWo}
    v_lshl_add_u32 v{vWo}, v{vT+6}, 4, v{vWo}
    v_lshl_add_u32 v{vBo}, v{vT+6}, 4, v{vBo}
    s_lshl_b32 s53, s26, 7
    s_add_u32 s53, s53, {FLB}
    s_lshl_b32 s54, s25, 5
    s_add_u32 s54, s54, {FLG}
    v_lshlrev_b32 v{vT+6}, 2, v{vT+1}
    v_add_u32 v{vT+6}, s53, v{vT+6}
    v_and_b32 v{vT+7}, 7, v1
    v_lshlrev_b32 v{vT+7}, 2, v{vT+7}
    v_add_u32 v{vT+7}, s54, v{vT+7}
    v_cmp_gt_u32 vcc, 32, v1
    v_lshlrev_b32 v{vFo}, 2, v1
    s_lshl_b32 s47, s24, 10             ; wave*1024
    v_cndmask_b32 v{vFl[0]}, v{vT+7}, v{vT+6}, vcc
    s_lshl_b32 s48, s24, 13
    s_lshl_b32 s49, s26, 7
    s_add_u32 s48, s48, s49
    s_mov_b32 s49, 0                    ; zero
    s_waitcnt lgkmcnt(0)
    """)
    srd(a,12,40,512*512*2); srd(a,16,42,0x200000)
def init_main(a):
    for r in range(32): a(f"v_mov_b32 v{vO[0]+r}, 0")
    for r in range(4,8): a(f"v_mov_b32 v{vP+r}, 0")
    for r in range(4,8): a(f"v_mov_b32 v{vV[1]+r}, 0")
def first_reads(a,nm):
    a(f"ds_read_b128 {vr(vK[0],4)}, v{vKa}")
    a(f"ds_read_b128 {vr(vV[0],4)}, v{vVa[0]}\nds_read_b128 {vr(vV[0]+4,4)}, v{vVa[1]} offset:512")
    a(f"s_waitcnt lgkmcnt(2)\n{MF} {vr(vS[0],16)}, {vr(vK[0],4)}, {vr(vQ[0],4)}, {vr(vNM[0],16) if nm else 0}")
def wodma(a,n):
    a(f"s_add_u32 m0, s47, {WOR[n>>1]+(n&1)*8192}\ns_add_u32 s53, s48, {n*65536}\nbuffer_load_dwordx4 v{vWo}, s[12:15], s53 offen lds")
def bload(a):
    a(f"""
    s_lshl_b32 s53, s26, 18
    s_lshl_b32 s54, s25, 7
    s_add_u32 s53, s53, s54
    s_lshl_b32 s54, s24, 15
    s_add_u32 s53, s53, s54
    s_add_u32 s53, s53, {BT}
    s_add_u32 m0, s47, {L_Q}
    s_lshl_b32 s54, s25, 8
    buffer_load_dwordx4 v{vBo}, s[20:23], s53 offen{SC} lds
    s_and_b32 s55, s24, 1
    s_lshl_b32 s55, s55, 7
    s_add_u32 s54, s54, s55
    s_add_u32 s54, s54, {G}
    v_and_b32 v{vG}, 0x7c, v{vFo}
    buffer_load_dword v{vG}, v{vG}, s[20:23], s54 offen{SC}
    """)

def kf():
    a=A()
    phaseA(a)
    att_setup(a); init_main(a)
    a(f"s_add_u32 s30, s30, {4*4096}\ns_add_u32 s31, s31, {4*4096}\ns_add_u32 s32, s32, {4*4096}\ns_add_u32 s38, s38, {16*VST}")
    a("s_barrier")
    stamp(a,6)
    conv_fin(a)
    consts(a,"s_lshr_b32 s53, s36, 1\ns_lshl_b32 s53, s53, 5\ns_and_b32 s54, s36, 1\ns_lshl_b32 s54, s54, 3\ns_add_u32 s53, s53, s54\ns_add_u32 s53, s53, 16")
    a("s_branch KF_ATT1")
    a("KF_ATT0:")
    att_setup(a); init_main(a)
    consts(a,"s_lshr_b32 s53, s36, 1\ns_lshl_b32 s53, s53, 5\ns_and_b32 s54, s36, 1\ns_lshl_b32 s54, s54, 3\ns_add_u32 s53, s53, s54")
    a("s_waitcnt vmcnt(0)")
    stamp(a,6); dstamp(a,4)
    set_flag(a,vT,68)
    a(f"s_lshr_b32 s53, s25, 1\ns_lshl_b32 s53, s53, 8\ns_add_u32 s53, s53, {FLQ}")
    poll(a,vFo,vT,53)
    stamp(a,7)
    a(f"""
    s_lshl_b32 s29, s28, 10
    s_add_u32 s29, s29, s27
    s_lshl_b32 s53, s36, 11
    s_add_u32 m0, s53, {L_Q}
    s_nop 0
    buffer_load_dwordx4 v{vLin}, s[20:23], s29 offen{SC} lds
    buffer_load_dwordx4 v{vLin}, s[20:23], s29 offen offset:1024{SC} lds
    """)
    for c in range(4):
        a(f"""
        s_add_u32 m0, s30, 32768
        s_add_u32 s53, s31, 32768
        buffer_load_dwordx4 v{vLin}, s[20:23], s53 offen{SC} lds
        s_add_u32 m0, s38, {32*VST}
        s_add_u32 s53, s32, 32768
        buffer_load_dwordx4 v{vLin}, s[20:23], s53 offen{SC} lds
        """)
        kvdma(a)
    a("s_waitcnt vmcnt(12) lgkmcnt(0)\ns_barrier")
    a("KF_ATT1:")
    stamp(a,3); stamp(a,8,True); dstamp(a,5)
    a(f"""
    s_setprio 3
    s_lshl_b32 s53, s36, 11
    s_add_u32 s53, s53, {L_Q}
    v_add_u32 v{vT}, s53, v{vLin}
    ds_read_b128 {vr(vQ[0],4)}, v{vT}
    ds_read_b128 {vr(vQ[1],4)}, v{vT} offset:1024
    """)
    first_reads(a,False)
    a("s_mov_b32 s43, 0\ns_waitcnt lgkmcnt(0)\ns_nop 7\ns_nop 3\n.p2align 6\nKF_LC:")
    n0=len(a.l)
    def hook(k):
        def f():
            a(f"s_cmp_eq_u32 s43, 1\ns_cbranch_scc0 KF_H{k}a")
            kvdma(a)
            a(f"KF_H{k}a:\ns_cmp_eq_u32 s43, 4\ns_cbranch_scc0 KF_H{k}b")
            wodma(a,2*k); wodma(a,2*k+1)
            a(f"KF_H{k}b:")
            if k==0:
                a(f"s_cmp_eq_u32 s43, 5\ns_cbranch_scc0 KF_H{k}c\nbuffer_load_dword v{vFl[1]}, v{vFl[0]}, s[20:23], 0 offen sc0 sc1\nKF_H{k}c:")
            if k==1:
                a(f"s_cmp_eq_u32 s43, 6\ns_cbranch_scc0 KF_H{k}c\ns_waitcnt vmcnt(0)\nv_cmp_ne_u32 vcc, s66, v{vFl[1]}\ns_nop 1\ns_cbranch_vccz KF_H{k}d")
                poll(a,vFl[0],vFl[1],49)
                a(f"KF_H{k}d:")
                bload(a)
                a(f"KF_H{k}c:")
        return f
    for j in range(4):
        if j==3:
            a(f"""
            s_lshr_b32 s53, 9, s43
            s_bitcmp1_b32 s53, 0
            s_cbranch_scc0 KF_NB
            s_waitcnt vmcnt(0)
            s_barrier
            s_add_u32 s53, s43, s24
            s_cmp_eq_u32 s53, 0
            s_cbranch_scc0 KF_NB
            """)
            set_flag(a,vT,44,45)
            a("KF_NB:")
        for s in range(2): sub(a,j,s,ev=({'b':[hook(j)]} if s==0 else None))
    adv(a)
    a("s_add_u32 s43, s43, 1\ns_cmp_lt_u32 s43, 8\ns_cbranch_scc1 KF_LC")
    r=check_loop(a.l[n0:]); assert not r, r
    a("KF_DONE:")
    a(f"s_nop 1\n{MF} {vr(vO[1],16)}, {vr(vV[1]+4,4)}, {vr(vP+4,4)}, {vr(vO[1],16)}")
    stamp(a,5); stamp(a,9,True); dstamp(a,6)
    a(f"""
    s_mul_i32 s53, s24, {XS}
    s_add_u32 s53, s53, {L_X}
    s_xor_b32 s54, s24, 4
    s_mul_i32 s54, s54, {XS}
    s_add_u32 s54, s54, {L_X}
    v_add_u32 v{vT}, s53, v{vLin}
    v_add_u32 v{vT+1}, s54, v{vLin}
    v_and_b32 v{vT+2}, 0x7c, v{vFo}
    v_add_u32 v{vT+3}, s54, v{vT+2}
    v_add_u32 v{vT+2}, s53, v{vT+2}
    s_cmp_eq_u32 s37, 0
    s_cbranch_scc1 KF_X0
    """)
    def xs(send,keep):
        a(f"ds_write_b128 v{vT}, {vr(send,4)}\nds_write_b128 v{vT}, {vr(send+4,4)} offset:1024\nds_write_b32 v{vT+2}, v{send+8} offset:2048")
        for r in range(9): a(f"v_mov_b32 v{vS[0]+r}, v{keep+r}")
    xs(vO[0],vO[1]); a("s_branch KF_X1\nKF_X0:\ns_nop 1"); xs(vO[1],vO[0])
    a(f"""
    KF_X1:
    s_add_u32 s33, s28, s37             ; q tile32
    s_lshl_b32 s50, s33, 7
    s_lshl_b32 s34, s25, 2
    s_add_u32 s50, s50, s34
    s_add_u32 s50, s50, {FLO}
    s_lshl_b32 s33, s33, 15
    s_lshl_b32 s34, s25, 10
    s_add_u32 s33, s33, s34
    s_add_u32 s33, s33, {OF}
    s_mov_b32 s56, {f32(2.0**120)}
    s_mov_b32 s57, {f32(2.0**100)}
    s_mov_b32 s58, {f32(2.0**-100)}
    s_waitcnt vmcnt(0) lgkmcnt(0)
    s_barrier
    ds_read_b128 {vr(vS[1],4)}, v{vT+1}
    ds_read_b128 {vr(vS[1]+4,4)}, v{vT+1} offset:1024
    ds_read_b32 v{vS[1]+8}, v{vT+3} offset:2048
    s_waitcnt lgkmcnt(0)
    """)
    o=vS[0]
    a(f"v_add_f32 v{o+8}, v{o+8}, v{vS[1]+8}\nv_rcp_f32 v{vT+4}, v{o+8}")
    for r in range(8): a(f"v_add_f32 v{o+r}, v{o+r}, v{vS[1]+r}")
    for r in range(8): a(f"v_mul_f32 v{vS[1]+r}, v{o+r}, v{vT+4}")
    for r in range(4): a(f"v_cvt_pk_bf16_f32 v{vP+r}, v{vS[1]+2*r}, v{vS[1]+2*r+1}")
    a(f"""
    buffer_store_dwordx4 {vr(vP,4)}, v{vLin}, s[20:23], s33 offen{SC}
    s_cmp_lg_u32 s46, 0
    s_cbranch_scc1 KF_REWO
    v_add_f32 v{vT}, abs(v{o}), abs(v{o+1})
    v_add_f32 v{vT+1}, abs(v{o+2}), abs(v{o+3})
    v_add_f32 v{vT+2}, abs(v{o+4}), abs(v{o+5})
    v_add_f32 v{vT+3}, abs(v{o+6}), abs(v{o+7})
    v_add_f32 v{vT}, v{vT}, v{vT+1}
    v_add_f32 v{vT+2}, v{vT+2}, v{vT+3}
    v_add_f32 v{vT}, v{vT}, v{vT+2}
    v_cmp_gt_f32 s[52:53], s56, v{vT}
    v_cmp_gt_f32 s[54:55], s57, v{o+8}
    v_cmp_lt_f32 s[64:65], s58, v{o+8}
    v_mov_b32 v{vT+1}, {L_FLAG}
    v_mov_b32 v{vT+2}, 1
    s_and_b64 s[52:53], s[52:53], s[54:55]
    s_and_b64 s[52:53], s[52:53], s[64:65]
    s_cmp_eq_u64 s[52:53], -1
    s_cbranch_scc1 KF_OK
    ds_write_b32 v{vT+1}, v{vT+2}
    KF_OK:
    s_waitcnt lgkmcnt(0)
    s_barrier
    ds_read_b32 v{vT+2}, v{vT+1}
    s_waitcnt lgkmcnt(0)
    v_readfirstlane_b32 s53, v{vT+2}
    s_cmp_eq_u32 s53, 0
    s_cbranch_scc0 KF_FALL
    KF_PC3:
    """)
    a(f"""
    s_and_b32 s36, s24, 1               ; th
    s_bfe_u32 s37, s24, 0x10001         ; dh
    s_lshl_b32 s51, s25, 8
    s_add_u32 s51, s51, {FLO}
    s_waitcnt vmcnt(0)
    """)
    set_flag(a,vT,50)
    stamp(a,2)
    a(f"""
    s_lshl_b32 s52, s25, 16
    s_add_u32 s52, s52, {OF}
    s_lshr_b32 s53, s24, 2
    s_lshl_b32 s54, s53, 15
    s_add_u32 s52, s52, s54
    s_and_b32 s54, s24, 3
    s_lshl_b32 s54, s54, 10
    s_add_u32 s52, s52, s54
    s_lshl_b32 s53, s53, 13
    s_add_u32 s53, s53, s54
    v_lshrrev_b32 v10, 5, v1
    v_bfe_u32 v11, v1, 2, 2
    v_lshl_add_u32 v12, v10, 2, v11
    v_lshlrev_b32 v12, 7, v12
    v_lshrrev_b32 v13, 1, v11
    v_xor_b32 v14, s37, v13
    v_lshl_add_u32 v14, v14, 6, v12
    v_bfe_u32 v15, v1, 4, 1
    v_lshlrev_b32 v15, 5, v15
    v_and_b32 v16, 3, v1
    v_lshl_add_u32 v15, v16, 3, v15
    v_add_u32 v14, v14, v15
    v_xor_b32 v17, s36, v13
    v_lshl_add_u32 v17, v17, 6, v12
    v_add_u32 v17, v17, v15
    s_lshl_b32 s54, s37, 12
    s_add_u32 s54, s54, {L_Q}
    v_add_u32 v17, s54, v17
    s_lshl_b32 s54, s36, 13
    v_add_u32 v9, s54, v{vLin}
    s_lshr_b32 s54, s24, 2
    s_mul_i32 s55, s54, {L_V}
    v_add_u32 v14, s55, v14
    s_mul_i32 s55, s54, {OR_[2]-OR_[0]}
    s_add_u32 s55, s55, {OR_[0]}
    v_add_u32 v9, s55, v9
    s_mul_i32 s55, s54, {32*VST-32768}
    s_add_u32 s55, s55, 32768
    v_add_u32 v18, s55, v14
    v_add_u32 v19, s55, v9
    """)
    poll(a,vFo,vT,51)
    stamp(a,4)
    for n in range(8):
        a(f"""
        s_add_u32 s54, s26, {n}
        s_and_b32 s54, s54, 7
        s_lshl_b32 s55, s54, 12
        s_add_u32 s56, s52, s55
        s_bfe_u32 s57, s54, 0x10002
        s_mul_i32 s58, s57, {OR_[2]-OR_[0]}
        s_mul_i32 s57, s57, {32*VST-32768}
        s_add_u32 s57, s57, 32768
        s_bfe_u32 s59, s54, 0x10001
        s_mul_i32 s57, s57, s59
        s_add_u32 s58, s58, s57
        s_and_b32 s55, s55, 4096
        s_add_u32 s58, s58, s55
        s_add_u32 s58, s58, s53
        s_add_u32 m0, s58, {OR_[0]}
        s_nop 0
        buffer_load_dwordx4 v{vLin}, s[20:23], s56 offen{SC} lds
        """)
    ACC=32; FR=48
    for h in range(16):
        wa = 14 if h<8 else 18
        a(f"ds_read_b64_tr_b16 {vr(FR+4*h,2)}, v{wa} offset:{(h&7)*2048}\nds_read_b64_tr_b16 {vr(FR+4*h+2,2)}, v{wa} offset:{(h&7)*2048+1024}")
    for g in range(4): a(f"ds_read_b64_tr_b16 {vr(20+2*g,2)}, v17 offset:{g*1024}")
    a(f"""
    v_sub_f32 v28, 1.0, v{vG}
    v_cvt_pk_bf16_f32 v28, v28, v28
    s_mov_b32 s40, 0xffff0000
    v_and_b32 v28, s40, v28
    v_and_b32 v29, 31, v1
    v_lshlrev_b32 v29, 10, v29
    v_lshl_add_u32 v29, v10, 4, v29
    s_lshl_b32 s41, s25, 16
    s_lshl_b32 s42, s36, 15
    s_add_u32 s41, s41, s42
    s_lshl_b32 s42, s37, 6
    s_add_u32 s41, s41, s42
    s_lshl_b32 s42, s26, 7
    s_add_u32 s41, s41, s42
    s_lshr_b32 s42, s24, 2
    s_lshl_b32 s42, s42, 5
    s_add_u32 s41, s41, s42
    s_mul_i32 s53, s24, {XS}
    s_add_u32 s53, s53, {L_X}
    s_xor_b32 s54, s24, 4
    s_mul_i32 s54, s54, {XS}
    s_add_u32 s54, s54, {L_X}
    v_add_u32 v30, s53, v{vLin}
    v_add_u32 v31, s54, v{vLin}
    s_waitcnt vmcnt(0) lgkmcnt(0)
    s_barrier
    """)
    stamp(a,7)
    OFR=112
    for h in range(8): a(f"ds_read_b128 {vr(OFR+4*h,4)}, v9 offset:{h*1024}")
    for h in range(16):
        a(f"s_waitcnt lgkmcnt({7 if h<8 else 15-h})")
        a(f"{MF} {vr(ACC,16)}, {vr(FR+4*h,4)}, {vr(OFR+4*(h&7),4)}, {'0' if h==0 else vr(ACC,16)}")
        if h<8: a(f"ds_read_b128 {vr(OFR+4*h,4)}, v19 offset:{h*1024}")
    a("s_cmp_lt_u32 s24, 4\ns_cbranch_scc1 KF_R0")
    a(f"ds_write_b128 v30, {vr(ACC,4)}\nds_write_b128 v30, {vr(ACC+4,4)} offset:1024")
    for r in range(8): a(f"v_mov_b32 v{ACC+r}, v{ACC+8+r}")
    for r in range(4): a(f"v_mov_b32 v{20+r}, v{24+r}")
    a("s_branch KF_R1\nKF_R0:\ns_nop 7\ns_nop 3")
    a(f"ds_write_b128 v30, {vr(ACC+8,4)}\nds_write_b128 v30, {vr(ACC+12,4)} offset:1024")
    a(f"KF_R1:\ns_waitcnt lgkmcnt(0)\ns_barrier\nds_read_b128 {vr(FR,4)}, v31\nds_read_b128 {vr(FR+4,4)}, v31 offset:1024")
    for k in range(4): a(f"v_lshlrev_b32 v{64+2*k}, 16, v{20+k}\nv_and_b32 v{65+2*k}, s40, v{20+k}")
    for r in range(8): a(f"v_mul_f32 v{64+r}, v28, v{64+r}")
    a("s_waitcnt lgkmcnt(0)")
    for r in range(8): a(f"v_add_f32 v{ACC+r}, v{ACC+r}, v{FR+r}")
    for r in range(8): a(f"v_fma_f32 v{64+r}, v{vG}, v{ACC+r}, v{64+r}")
    for k in range(4): a(f"v_cvt_pk_bf16_f32 v{72+k}, v{64+2*k}, v{65+2*k}")
    a(f"""
    v_permlane32_swap_b32 v72, v74
    v_permlane32_swap_b32 v73, v75
    buffer_store_dwordx4 v[72:75], v29, s[16:19], s41 offen
    """)
    stamp_out(a,0,8)
    if DIAG:
        dstamp(a,7)
        a("s_cmp_lg_u32 s24, 0\ns_cbranch_scc1 KF_END")
        dout(a,[1,2,3,4,5,6,7])
    a("s_endpgm")
    a(f"""
    KF_FALL:
    s_mov_b32 s46, 1
    s_sub_u32 s30, s30, {8*4096}
    s_sub_u32 s31, s31, {8*4096}
    s_sub_u32 s32, s32, {8*4096}
    s_sub_u32 s38, s38, {32*VST}
    """)
    for c in range(8): kvdma(a)
    consts(a,"s_lshl_b32 s53, s24, 3")
    a(f"""
    s_waitcnt vmcnt(0) lgkmcnt(0)
    s_barrier
    v_mov_b32 v{vT}, 0xff800000
    v_mov_b32 v{vT+1}, 0xff800000
    v_mov_b32 v{vT+2}, v{vLin}
    s_mov_b32 s43, 64
    KF_MAXLOOP:
    ds_read_b128 {vr(vK[0],4)}, v{vT+2}
    v_add_u32 v{vT+2}, 1024, v{vT+2}
    s_waitcnt lgkmcnt(0)
    {MF} {vr(vS[0],16)}, {vr(vK[0],4)}, {vr(vQ[0],4)}, 0
    {MF} {vr(vS[1],16)}, {vr(vK[0],4)}, {vr(vQ[1],4)}, 0
    """)
    for s in range(2):
        for k in range(8): a(f"v_max3_f32 v{vT+s}, v{vT+s}, v{vS[s]+2*k}, v{vS[s]+2*k+1}")
    a(f"""
    s_sub_u32 s43, s43, 1
    s_cmp_lg_u32 s43, 0
    s_cbranch_scc1 KF_MAXLOOP
    v_mov_b32 v{vT+2}, v{vT}
    v_mov_b32 v{vT+3}, v{vT+1}
    v_permlane32_swap_b32 v{vT}, v{vT+2}
    v_permlane32_swap_b32 v{vT+1}, v{vT+3}
    v_max_f32 v{vT}, v{vT}, v{vT+2}
    v_max_f32 v{vT+1}, v{vT+1}, v{vT+3}
    v_subrev_u32 v{vKa}, {8*4096}, v{vKa}
    v_subrev_u32 v{vVa[0]}, {32*VST}, v{vVa[0]}
    v_subrev_u32 v{vVa[1]}, {32*VST}, v{vVa[1]}
    """)
    for s in range(2):
        for r in range(16): a(f"v_sub_f32 v{vNM[s]+r}, 0, v{vT+s}")
    init_main(a)
    first_reads(a,True)
    a("s_mov_b32 s43, 8\ns_waitcnt lgkmcnt(0)\ns_nop 7\ns_nop 3\nKF_LF:")
    n0=len(a.l)
    for j in range(4):
        for s in range(2): sub(a,j,s,nm=True)
    adv(a)
    a("s_sub_u32 s43, s43, 1\ns_cmp_lg_u32 s43, 0\ns_cbranch_scc1 KF_LF")
    r=check_loop(a.l[n0:]); assert not r, r
    a("s_branch KF_DONE\nKF_REWO:")
    for n in range(8): wodma(a,n)
    a("s_waitcnt vmcnt(0)\ns_barrier\ns_branch KF_PC3")
    a("KF_END:\ns_endpgm")
    return a.l, dict(vgpr=232, sgpr=100, grid=256, block=512, lds=163840)
```
